```python
import torch

def _softmax(x, axis=-1):
    return torch.softmax(x, dim=axis)
def _gelu(x):
    return torch.nn.functional.gelu(x, approximate="tanh")
def _silu(x):
    return torch.nn.functional.silu(x)
def _sigmoid(x):
    return torch.sigmoid(x)
def _layernorm(x, axis=-1, eps=1e-5):
    m = x.mean(dim=axis, keepdim=True)
    v = x.var(dim=axis, keepdim=True, unbiased=False)
    return (x - m) / torch.sqrt(v + eps)
def _scatter_add(tgt, idx, src, axis=0):
    return tgt.clone().index_add_(axis, idx, src)
def _segment_sum(src, seg, n):
    out = torch.zeros((n,) + src.shape[1:], dtype=src.dtype)
    return out.index_add_(0, seg, src)
def _pad(x, pw):
    flat = tuple(v for pair in reversed(pw) for v in pair)
    return torch.nn.functional.pad(x, flat)

kernel_name = 'parallel_sum__mha_block__glu_gated_swiglu__prompt'

def setup_inputs():

    _w = (lambda a: (lambda t: t.to(torch.bfloat16) if t.is_floating_point() else t)(torch.as_tensor(a)))
    def _A_setup():
        B, S, D, H = 1, 2048, 576, 32
        return {
            "x": _w((lambda *s: torch.randn(*s, dtype=torch.bfloat16) * 0.05)(B, S, D)),
            "wqkv": _w((lambda *s: torch.randn(*s, dtype=torch.bfloat16) * 0.05)(D, 3 * D)),
            "wo": _w((lambda *s: torch.randn(*s, dtype=torch.bfloat16) * 0.05)(D, D)),
        }
    _A_in = _A_setup()

    def _B_setup():
        B, S, D, F = 1, 2048, 576, 4608
        return {
            "x": _w((lambda *s: torch.randn(*s, dtype=torch.bfloat16) * 0.05)(B, S, D)),
            "w1": _w((lambda *s: torch.randn(*s, dtype=torch.bfloat16) * 0.4)(D, F) * (2.0 / D) ** 0.5),
            "w3": _w((lambda *s: torch.randn(*s, dtype=torch.bfloat16) * 0.4)(D, F) * (2.0 / D) ** 0.5),
            "w2": _w((lambda *s: torch.randn(*s, dtype=torch.bfloat16) * 0.4)(F, D) * (2.0 / F) ** 0.5),
        }
    _B_in = _B_setup()

    return {
        "A_x": _A_in["x"],
        "A_wqkv": _A_in["wqkv"],
        "A_wo": _A_in["wo"],
        "B_x": _B_in["x"],
        "B_w1": _B_in["w1"],
        "B_w3": _B_in["w3"],
        "B_w2": _B_in["w2"],
    }

def reference(A_x, A_wqkv, A_wo, B_x, B_w1, B_w3, B_w2):
    def _A_ref(x, wqkv, wo):
        B, S, D = x.shape
        H = 32
        Dh = D // H
        qkv = (lambda x, *d: x.permute(*d))((x @ wqkv).reshape(B, S, 3, H, Dh), 2, 0, 3, 1, 4)
        q, k, v = qkv[0], qkv[1], qkv[2]
        scores = torch.einsum("bhqd,bhkd->bhqk", q, k) * (Dh ** -0.5)
        p = _softmax(scores, axis=-1)
        o = torch.einsum("bhqk,bhkd->bhqd", p, v)
        return (lambda x, *d: x.permute(*d))(o, 0, 2, 1, 3).reshape(B, S, D) @ wo

    def _B_ref(x, w1, w3, w2):
        gate = torch.einsum("bsd,df->bsf", x, w1)
        up = torch.einsum("bsd,df->bsf", x, w3)
        h = _silu(gate) * up
        out = torch.einsum("bsf,fd->bsd", h, w2)
        return out

    x = A_x
    xn = _layernorm(x, axis=-1)
    return x + _A_ref(xn, A_wqkv, A_wo) + _B_ref(xn, B_w1, B_w3, B_w2)
```

```python
import sys
NAME="parallel_sum__mha_block__glu_gated_swiglu__prompt"
out=[]
import os
ABL=os.environ.get("ABL","")
def e(s):
    if "atnost" in ABL and s.startswith("buffer_store") and ("v7, s[44:47], 0 offen" in s or "v8, s[44:47], 0 offen" in s): return
    if "g2dma" in ABL and s.endswith(" lds") and ("s[56:59], s60" in s or "v6, s[44:47], s61" in s): return
    if "g2mfma" in ABL and s.startswith("v_mfma") and any(f"bf16 v[{20+16*i}:" in s for i in range(6)): return
    if "g2ds" in ABL and s.startswith("ds_read_b64_tr") and "v17 " in s: return
    if "g2bar" in ABL and s=="s_barrier" and "g2_loop:" in out[-60:]+out: return
    if "nostore" in ABL and s.startswith("buffer_store") and "v21" in s: return
    if "nodma" in ABL and s.endswith(" lds") and "v20" in s: return
    if "nods" in ABL and s.startswith("ds_read_b64_tr") and "v213" in s: return
    if "nomfma" in ABL and s.startswith("v_mfma") and "v[16:31]" in s: return
    if s.startswith("buffer_store") and "v21" in s and os.environ.get("STF"): s+=" "+os.environ["STF"]
    out.append(s)
WS_QKV=0; WS_AH=0x800000; WS_P=0x2000000; WS_XN=0x3800000
LDQ=3456; LDA=10368
def srd(d,b,size):
    e(f"s_mov_b32 s{d}, s{b}"); e(f"s_and_b32 s{d+1}, s{b+1}, 0xffff"); e(f"s_mov_b32 s{d+2}, {size}"); e(f"s_mov_b32 s{d+3}, 0x00020000")
def kdesc(name,vg,sg=102):
    return f""".section .rodata,"a"
.p2align 6
.amdhsa_kernel {name}
  .amdhsa_next_free_vgpr {vg}
  .amdhsa_next_free_sgpr {sg}
  .amdhsa_accum_offset {(vg+3)//4*4}
  .amdhsa_group_segment_fixed_size 0
  .amdhsa_kernarg_size 80
  .amdhsa_user_sgpr_count 2
  .amdhsa_user_sgpr_kernarg_segment_ptr 1
  .amdhsa_system_sgpr_workgroup_id_x 1
.end_amdhsa_kernel
.text
"""
STWG=int(os.environ.get("STWG","0"))
def stamp(idx, wavereg="s18", STWG=STWG, wv=0):
    if "stamp" not in ABL: return
    L=len(out)
    e(f"s_cmp_lg_u32 s2, {STWG}"); e(f"s_cbranch_scc1 st_{L}"); e(f"s_cmp_lg_u32 {wavereg}, {wv}"); e(f"s_cbranch_scc1 st_{L}")
    e("s_load_dwordx2 s[90:91], s[0:1], 64"); e("s_memtime s[92:93]"); e("s_waitcnt lgkmcnt(0)")
    e("s_mov_b32 s96, s90"); e("s_and_b32 s97, s91, 0xffff"); e("s_movk_i32 s98, 256"); e("s_mov_b32 s99, 0x20000")
    e("v_mov_b32 v14, s92"); e("v_mov_b32 v15, 0"); e(f"buffer_store_dword v14, v15, s[96:99], 0 offen offset:{4*idx}")
    e(f"st_{L}:")
def stampall(slot, neg, wavereg="s18"):
    if "stamp" not in ABL: return
    L=len(out)
    e(f"s_cmp_lg_u32 {wavereg}, 0"); e(f"s_cbranch_scc1 sa_{L}")
    e("s_load_dwordx2 s[90:91], s[0:1], 64"); e("s_memrealtime s[92:93]"); e("s_waitcnt lgkmcnt(0)")
    e("s_mov_b32 s96, s90"); e("s_and_b32 s97, s91, 0xffff"); e("s_movk_i32 s98, 256"); e("s_mov_b32 s99, 0x20000")
    if neg: e("s_not_b32 s92, s92")
    e("v_mov_b32 v14, s92"); e("v_mov_b32 v15, 0"); e("s_mov_b64 s[88:89], exec"); e("s_mov_b64 exec, 1"); e(f"buffer_atomic_umax v14, v15, s[96:99], 0 offen offset:{4*slot}"); e("s_mov_b64 exec, s[88:89]")
    e(f"sa_{L}:")
def wgstamp(idx, wavereg="s18", kb=0, wv=0):
    if "stamp" not in ABL: return
    L=len(out)
    e(f"s_cmp_lg_u32 {wavereg}, {wv}"); e(f"s_cbranch_scc1 sw_{L}")
    e("s_load_dwordx2 s[90:91], s[0:1], 72"); e("s_memrealtime s[92:93]"); e("s_waitcnt lgkmcnt(0)")
    e("s_add_u32 s96, s90, %d"%(0x1F00000+kb*32768)); e("s_addc_u32 s97, s91, 0"); e("s_and_b32 s97, s97, 0xffff"); e("s_mov_b32 s98, 32768"); e("s_mov_b32 s99, 0x20000")
    e("v_mov_b32 v14, s92"); e("s_lshl_b32 s89, s2, 4"); e("v_mov_b32 v15, s89"); e("s_mov_b64 s[88:89], exec"); e("s_mov_b64 exec, 1"); e(f"buffer_store_dword v14, v15, s[96:99], 0 offen offset:{4*idx}"); e("s_mov_b64 exec, s[88:89]")
    e(f"sw_{L}:")
def khead(name):
    e(f".globl {name}"); e(".p2align 8"); e(f".type {name},@function"); e(f"{name}:")

def k1():
    khead("g1_kernel")
    XF=64; ACCG=16; ACCU=32; BF=48
    e("s_cmp_ge_u32 s2, 256"); e("s_cbranch_scc1 g1_end")
    e("s_load_dwordx4 s[4:7], s[0:1], 0")
    e("s_load_dwordx4 s[8:11], s[0:1], 32")
    e("s_load_dwordx2 s[12:13], s[0:1], 72")
    e("s_and_b32 s14, s2, 7"); e("s_lshr_b32 s15, s2, 3"); e("s_and_b32 s16, s15, 7")
    e("s_lshr_b32 s15, s15, 3"); e("s_lshl_b32 s14, s14, 2"); e("s_add_u32 s17, s14, s15")
    e("v_lshrrev_b32 v1, 6, v0"); e("s_nop 0"); e("v_readfirstlane_b32 s18, v1")
    e("v_and_b32 v2, 63, v0")
    e("s_waitcnt lgkmcnt(0)")
    e("s_add_u32 s40, s12, %d"%WS_XN); e("s_addc_u32 s41, s13, 0"); srd(20,40,2048*1152)
    srd(24,6,576*1728*2)
    srd(28,8,576*4608*2)
    srd(32,10,576*4608*2)
    e("s_add_u32 s40, s12, %d"%WS_QKV); e("s_addc_u32 s41, s13, 0"); srd(36,40,2048*LDQ)
    e("s_add_u32 s40, s12, %d"%WS_AH); e("s_addc_u32 s41, s13, 0"); srd(44,40,2048*LDA)
    wgstamp(0,kb=1)
    e("v_and_b32 v3, 31, v2"); e("v_lshrrev_b32 v4, 5, v2")
    e("s_lshl_b32 s19, s16, 8"); e("s_lshl_b32 s40, s18, 5"); e("s_add_u32 s19, s19, s40")
    e("v_add_u32 v5, s19, v3")
    if "wide" in ABL: e("v_lshrrev_b32 v10, 3, v2"); e("v_and_b32 v11, 7, v2"); e("v_lshlrev_b32 v11, 4, v11")
    else: e("v_lshrrev_b32 v10, 2, v2"); e("v_and_b32 v11, 3, v2"); e("v_lshlrev_b32 v11, 4, v11")
    e("v_mul_u32_u24 v208, 9216, v10"); e("v_add_u32 v208, v208, v11")
    e("v_mul_u32_u24 v209, 3456, v10"); e("v_add_u32 v209, v209, v11")
    e("v_mul_u32_u24 v210, 18432, v4"); e("v_bfe_u32 v10, v2, 2, 2"); e("v_lshlrev_b32 v10, 6, v10"); e("v_add_u32 v210, v210, v10")
    e("v_bfe_u32 v10, v2, 4, 1"); e("v_lshlrev_b32 v10, 5, v10"); e("v_add_u32 v210, v210, v10")
    e("v_and_b32 v10, 3, v2"); e("v_lshlrev_b32 v10, 3, v10"); e("v_add_u32 v210, v210, v10")
    e(f"v_mul_lo_u32 v211, v5, s42") if False else None
    e(f"s_movk_i32 s42, {LDA}"); e("v_mul_lo_u32 v211, v5, s42"); e("v_lshlrev_b32 v10, 3, v4"); e("v_add_u32 v211, v211, v10"); e("v_add_u32 v211, 1152, v211")
    e("v_mul_u32_u24 v212, 36, v5")
    e("s_lshl_b32 s40, s18, 11"); e("s_add_u32 s40, s40, 147456"); e("v_lshlrev_b32 v7, 6, v3"); e("v_lshl_add_u32 v7, v4, 3, v7"); e("v_add_u32 v7, s40, v7")
    e("v_lshrrev_b32 v10, 4, v2"); e("v_and_b32 v11, 15, v2"); e("v_lshlrev_b32 v12, 6, v10"); e("v_lshl_add_u32 v12, v11, 2, v12"); e("v_add_u32 v12, s40, v12")
    e("v_add_u32 v13, s19, v10"); e("v_mul_u32_u24 v13, 36, v13"); e("v_lshlrev_b32 v214, 1, v11")
    e("s_lshr_b32 s50, s18, 2"); e("s_and_b32 s51, s18, 3"); e("s_mul_i32 s51, s51, 144"); e("s_mul_i32 s52, s18, 9216")
    e("s_mov_b32 s53, s17")
    e("s_sub_u32 s80, s17, 10"); e("s_and_b32 s81, s80, 1"); e("s_lshr_b32 s80, s80, 1"); e("s_add_u32 s80, s80, 160"); e("s_cmp_lt_u32 s17, 10"); e("s_cselect_b32 s80, 255, s80")
    cnt=[0]
    def stage(ureg,slotreg):
        cnt[0]+=1; L=cnt[0]
        e(f"s_add_u32 s64, s52, s{slotreg}")
        e(f"s_cmp_lt_u32 s{ureg}, 27"); e(f"s_cbranch_scc1 g1_sq{L}")
        e("s_cmp_eq_u32 s50, 0"); e("s_cselect_b32 s56, s28, s32"); e("s_cselect_b32 s57, s29, s33"); e("s_mov_b32 s58, s30"); e("s_mov_b32 s59, s31")
        e("s_mul_i32 s54, s51, 9216"); e(f"s_sub_u32 s55, s{ureg}, 27"); e(f"s_lshl_b32 s55, s55, 6"); e("s_add_u32 s54, s54, s55")
        for t in range(9):
            e(f"s_add_u32 m0, s64, {t*1024}"); e(f"s_add_u32 s61, s54, {(t*16)*9216}")
            e("buffer_load_dwordx4 v208, s[56:59], s61 offen lds")
        e(f"s_branch g1_sd{L}")
        e(f"g1_sq{L}:")
        e("s_mul_i32 s54, s51, 3456"); e(f"s_lshl_b32 s55, s{ureg}, 7"); e("s_add_u32 s54, s54, s55"); e("s_lshl_b32 s55, s50, 6"); e("s_add_u32 s54, s54, s55")
        for t in range(9):
            e(f"s_add_u32 m0, s64, {t*1024}"); e(f"s_add_u32 s61, s54, {(t*16)*3456}")
            e("buffer_load_dwordx4 v209, s[24:27], s61 offen lds")
        e(f"g1_sd{L}:")
    def stage_setup(ureg,slotreg):
        e(f"s_min_u32 s69, s{ureg}, 170"); e("s_sub_u32 s69, s69, 27")
        e(f"s_add_u32 s64, s52, s{slotreg}")
        e("s_cmp_eq_u32 s50, 0"); e("s_cselect_b32 s56, s28, s32"); e("s_cselect_b32 s57, s29, s33"); e("s_mov_b32 s58, s30"); e("s_mov_b32 s59, s31")
        e("s_mul_i32 s54, s51, 9216"); e("s_lshl_b32 s55, s69, 6"); e("s_add_u32 s61, s54, s55")
        if "t1" in ABL: e(f"s_cmp_gt_u32 s{ureg}, 170"); e("s_cselect_b32 s58, 0, s58")
    def stage_list():
        L=[]
        for t in range(9):
            L.append([f"s_add_u32 m0, s64, {t*1024}", "s_nop 0", "buffer_load_dwordx4 v208, s[56:59], s61 offen lds", "s_add_u32 s61, s61, 147456"])
        return L
    RB=[48,56,248]
    SETS=[(16,32),(216,232)]
    def ffn_epi(G,U,ureg):
        L=[]
        for i in range(16):
            t=8+(i&3)
            L+=[f"v_mul_f32 v{t}, 0xbfb8aa3b, v{G+i}", f"v_exp_f32 v{t}, v{t}", f"v_mul_f32 v{G+i}, v{G+i}, v{U+i}", f"v_add_f32 v{t}, 1.0, v{t}", f"v_rcp_f32 v{t}, v{t}", "s_nop 0", f"v_mul_f32 v{G+i}, v{G+i}, v{t}"]
        for i in range(8): L.append(f"v_cvt_pk_bf16_f32 v{U+i}, v{G+2*i}, v{G+2*i+1}")
        L.append(f"s_sub_u32 s67, s{ureg}, 27"); L.append(f"s_lshl_b32 s67, s67, 6")
        for q in range(4): L.append(f"buffer_store_dwordx2 v[{U+2*q}:{U+2*q+1}], v211, s[44:47], s67 offen offset:{16*q}")
        return L
    XD=int(os.environ.get("XD","8")); vlog=[]; PS=int(os.environ.get("PS","-1"))
    def xload(s):
        if s%4==0 and s: e("s_add_u32 s40, s40, 4096")
        e(f"buffer_load_dwordx4 v[{XF+4*s}:{XF+4*s+3}], v6, s[20:23], s40 offen offset:{1024*(s%4)}"); vlog.append(("x",s))
    def qkv_epi(G,U):
        L=[]
        for half,A in ((0,G),(1,U)):
            L+=["s_lshl_b32 s72, s68, 1", f"s_add_u32 s72, s72, {half}", "s_cmp_lt_u32 s72, 18", "s_cselect_b32 s73, 0x3eae1a93, 1.0"]
            for i in range(16): L.append(f"v_mul_f32 v{A+i}, s73, v{A+i}")
            for i in range(8): L.append(f"v_cvt_pk_bf16_f32 v{A+i}, v{A+2*i}, v{A+2*i+1}")
            for q in range(4): L.append(f"ds_write_b64 v7, v[{A+2*q}:{A+2*q+1}] offset:{16*q}")
            for k in range(8): L.append(f"ds_read_b32 v{A+8+k}, v12 offset:{256*k}")
            L+=["s_mul_i32 s74, s72, 3641", "s_lshr_b32 s74, s74, 16", "s_mul_i32 s75, s74, 18", "s_sub_u32 s75, s72, s75", "s_lshl_b32 s75, s75, 5", "s_mul_i32 s74, s74, 2359296"]
            L+=["v_add_u32 v9, s75, v214", "v_mul_u32_u24 v10, 3641, v9", "v_lshrrev_b32 v10, 16, v10", "v_mul_u32_u24 v11, 18, v10", "v_sub_u32 v11, v9, v11",
                "v_mul_u32_u24 v10, 73728, v10", "v_lshl_add_u32 v10, v11, 1, v10", "v_add_u32 v10, v10, v13", "s_waitcnt lgkmcnt(0)"]
            for k in range(8): L.append(f"buffer_store_dword v{A+8+k}, v10, s[36:39], s74 offen offset:{144*k}")
        return L
    def compute(G,U,extra,dma=(),xw=False):
        def rd(s):
            pp=RB[s%3]
            for nb in range(2):
                for q in range(2):
                    e(f"ds_read_b64_tr_b16 v[{pp+nb*4+q*2}:{pp+nb*4+q*2+1}], v213 offset:{(nb*144+2*s+q)*256}")
        rd(0); rd(1)
        ex=list(extra); per=(len(ex)+31)//32
        for s in range(36):
            if s+2<36: rd(s+2)
            if xw: e("s_waitcnt vmcnt(%d) lgkmcnt(%d)"%(len(vlog)-1-vlog.index(("x",s)),4*min(2,35-s)))
            else: e("s_waitcnt lgkmcnt(%d)"%(4*min(2,35-s)))
            pp=RB[s%3]; x=XF+4*s
            if dma and s%3==1 and s//3<9:
                for z in dma[s//3]: e(z)
                vlog.append(("d",s))
            if xw and s+XD<36: xload(s+XD)
            if xw and s==PS: e("buffer_load_dword v10, v9, s[76:79], s73 offen"); vlog.append(("p",0))
            c0="0" if s==0 else f"v[{G}:{G+15}]"; c1="0" if s==0 else f"v[{U}:{U+15}]"
            e(f"v_mfma_f32_32x32x16_bf16 v[{G}:{G+15}], v[{pp}:{pp+3}], v[{x}:{x+3}], {c0}")
            if s>=3:
                for _ in range((per+1)//2):
                    if ex: e(ex.pop(0))
            e(f"v_mfma_f32_32x32x16_bf16 v[{U}:{U+15}], v[{pp+4}:{pp+7}], v[{x}:{x+3}], {c1}")
            if s>=3:
                for _ in range(per//2):
                    if ex: e(ex.pop(0))
        for z in ex: e(z)
    e("s_mov_b32 s63, 0"); e("s_mov_b32 s65, 73728")
    stage(53,63)
    e("s_lshr_b32 s40, s19, 5"); e("s_mul_i32 s40, s40, 36864"); e("v_lshlrev_b32 v6, 4, v2")
    for s in range(XD): xload(s)
    if "pfx" not in ABL:
        e("s_lshl_b32 s72, s2, 3"); e("s_add_u32 s72, s72, s18")
        e("s_cmp_lt_u32 s72, 648"); e("s_cselect_b32 s76, s28, s32"); e("s_cselect_b32 s77, s29, s33"); e("s_cselect_b32 s73, 0, 648"); e("s_mov_b32 s78, s30"); e("s_mov_b32 s79, s31")
        e("s_cmp_lt_u32 s72, 1296"); e("s_cselect_b32 s76, s76, s24"); e("s_cselect_b32 s77, s77, s25"); e("s_cselect_b32 s78, s78, s26"); e("s_cselect_b32 s73, s73, 1296")
        e("s_sub_u32 s73, s72, s73"); e("s_lshl_b32 s73, s73, 13"); e("v_lshlrev_b32 v9, 7, v2")
        if PS<0: e("buffer_load_dword v10, v9, s[76:79], s73 offen"); vlog.append(("p",0))
    elif "nopf" not in ABL:
        e("s_lshl_b32 s72, s16, 3"); e("s_add_u32 s72, s72, s18"); e("s_mul_i32 s73, s72, 57"); e("s_lshr_b32 s73, s73, 9")
        e("s_mul_i32 s74, s73, 9"); e("s_sub_u32 s74, s72, s74"); e("s_lshl_b32 s74, s74, 6"); e("v_add_u32 v9, s74, v2"); e("v_mul_u32_u24 v9, 9216, v9")
        e("s_lshl_b32 s73, s73, 5"); e("s_add_u32 s73, s73, s17"); e("s_add_u32 s73, s73, 32"); e("s_min_u32 s73, s73, 170"); e("s_sub_u32 s73, s73, 27"); e("s_lshl_b32 s73, s73, 6")
        e("buffer_load_dword v10, v9, s[28:31], s73 offen"); e("buffer_load_dword v11, v9, s[32:35], s73 offen"); vlog.append(("p",0)); vlog.append(("p",1))
    def body(k,first,vm=4):
        G,U=SETS[k]; PG,PU=SETS[k^1]
        e("v_add_u32 v213, s63, v210")
        st=False
        if st: stamp(3)
        e(f"s_waitcnt vmcnt({vm})")
        if st: stamp(4)
        e("s_barrier")
        if st: stamp(5)
        e("s_add_u32 s62, s53, 32"); e("s_cmp_ge_u32 s62, 160"); e("s_cselect_b32 s62, s80, s62"); e("s_cmp_ge_u32 s53, 160"); e("s_cselect_b32 s62, 255, s62"); stage_setup(62,65)
        if first==3:
            e("s_cmp_lt_u32 s53, 160"); e("s_cbranch_scc1 g1_act"); e("s_cmp_eq_u32 s50, s81"); e("s_cbranch_scc1 g1_act")
            for z in ffn_epi(PG,PU,68): e(z)
            e("s_branch g1_done"); e("g1_act:")
        if st: stamp(6)
        if first==1: compute(G,U,[],stage_list(),True)
        elif first==2:
            e("s_cmp_lt_u32 s68, 27"); e("s_cbranch_scc1 g1_b2q")
            compute(G,U,ffn_epi(PG,PU,68),stage_list())
            e("s_branch g1_b2d"); e("g1_b2q:")
            compute(G,U,qkv_epi(PG,PU),stage_list())
            e("g1_b2d:")
        else: compute(G,U,ffn_epi(PG,PU,68),stage_list())
        if st: stamp(7)
        e("s_mov_b32 s66, s63"); e("s_mov_b32 s63, s65"); e("s_mov_b32 s65, s66")
        e("s_mov_b32 s68, s53"); e("s_mov_b32 s53, s62"); e("s_cmp_ge_u32 s53, 171"); e(f"s_cbranch_scc1 g1_fin{k}")
    body(0,1,len(vlog)); body(1,2,0)
    e("g1_loop:")
    body(0,0); body(1,3)
    e("s_branch g1_loop")
    for k in range(2):
        G,U=SETS[k]
        e(f"g1_fin{k}:"); e("s_nop 15")
        for z in ffn_epi(G,U,68): e(z)
        e("s_branch g1_done")
    e("g1_done:")
    e("s_waitcnt vmcnt(0)"); wgstamp(1,kb=1); wgstamp(2,kb=1,wv=4); wgstamp(3,kb=1,wv=7)
    e("g1_end:"); e("s_endpgm")
    e(kdesc("g1_kernel",256))

def main():
  pass

def k0():
    khead("ln_kernel")
    e("s_cmp_ge_u32 s2, 256"); e("s_cbranch_scc1 ln_end")
    e("s_load_dwordx2 s[4:5], s[0:1], 0"); e("s_load_dwordx2 s[12:13], s[0:1], 72"); e("s_load_dwordx2 s[6:7], s[0:1], 8"); e("s_load_dwordx4 s[8:11], s[0:1], 32")
    e("s_and_b32 s14, s2, 7"); e("s_lshl_b32 s14, s14, 2"); e("s_lshr_b32 s15, s2, 3"); e("s_lshl_b32 s15, s15, 8"); e("v_add_u32 v2, s15, v0")
    e("v_lshrrev_b32 v2, 6, v0"); e("s_nop 0"); e("v_readfirstlane_b32 s18, v2"); wgstamp(0,kb=0)
    e("s_waitcnt lgkmcnt(0)")
    e("s_cmp_ge_u32 s2, 64"); e("s_cbranch_scc1 ln_pf")
    e("s_lshl_b32 s3, s2, 8"); e("v_add_u32 v1, s3, v0"); e("v_mul_u32_u24 v1, 144, v1")
    e("s_waitcnt lgkmcnt(0)")
    srd(20,4,2048*1152); e("s_add_u32 s40, s12, %d"%WS_XN); e("s_addc_u32 s41, s13, 0"); srd(24,40,2048*1152)
    for i in range(9): e(f"buffer_load_dwordx4 v[{16+4*i}:{19+4*i}], v1, s[20:23], 0 offen offset:{16*i}")
    e("ln_pf:")
    if "lnpf" in ABL:
        srd(28,8,576*4608*2); srd(32,10,576*4608*2); srd(36,6,576*1728*2)
        e("v_lshrrev_b32 v2, 6, v0"); e("s_nop 0"); e("v_readfirstlane_b32 s18, v2"); e("v_and_b32 v2, 63, v0"); e("v_lshlrev_b32 v9, 7, v2")
        for p in range(2):
            e("s_lshl_b32 s72, s2, 2"); e("s_add_u32 s72, s72, s18"); e(f"s_add_u32 s72, s72, {1024*p}")
            e("s_cmp_lt_u32 s72, 648"); e("s_cselect_b32 s76, s28, s32"); e("s_cselect_b32 s77, s29, s33"); e("s_cselect_b32 s73, 0, 648"); e("s_mov_b32 s78, s30"); e("s_mov_b32 s79, s31")
            e("s_cmp_lt_u32 s72, 1296"); e("s_cselect_b32 s76, s76, s36"); e("s_cselect_b32 s77, s77, s37"); e("s_cselect_b32 s78, s78, s38"); e("s_cselect_b32 s73, s73, 1296")
            e("s_sub_u32 s73, s72, s73"); e("s_lshl_b32 s73, s73, 13")
            e(f"buffer_load_dword v{60+p}, v9, s[76:79], s73 offen")
    e("s_cmp_ge_u32 s2, 64"); e("s_cbranch_scc1 ln_end")
    e("v_mov_b32 v8, 0"); e("v_mov_b32 v9, 0"); e("s_waitcnt vmcnt(%d)"%(2 if "lnpf" in ABL else 0))
    def red(r):
        for off in (0x041F,0x081F,0x101F):
            e(f"ds_swizzle_b32 v10, v{r} offset:{off}"); e("s_waitcnt lgkmcnt(0)"); e(f"v_add_f32 v{r}, v{r}, v10")
    for r in range(36):
        e(f"v_lshlrev_b32 v10, 16, v{16+r}"); e(f"v_and_b32 v11, 0xffff0000, v{16+r}"); e("v_add_f32 v8, v8, v10"); e("v_add_f32 v9, v9, v11")
    e("v_add_f32 v8, v8, v9"); red(8); e("v_mul_f32 v8, 0x3ae38e39, v8")
    e("v_mov_b32 v12, 0"); e("v_mov_b32 v13, 0")
    for r in range(36):
        e(f"v_lshlrev_b32 v10, 16, v{16+r}"); e(f"v_and_b32 v11, 0xffff0000, v{16+r}"); e("v_sub_f32 v10, v10, v8"); e("v_sub_f32 v11, v11, v8")
        e("v_fmac_f32 v12, v10, v10"); e("v_fmac_f32 v13, v11, v11")
    e("v_add_f32 v12, v12, v13"); red(12)
    e("v_mov_b32 v13, 0x3727c5ac"); e("v_fmac_f32 v13, 0x3ae38e39, v12"); e("v_rsq_f32 v12, v13"); e("s_nop 0"); e("v_mul_f32 v13, v8, v12"); e("v_sub_f32 v13, 0, v13")
    for r in range(36):
        e(f"v_lshlrev_b32 v10, 16, v{16+r}"); e(f"v_and_b32 v11, 0xffff0000, v{16+r}"); e("v_fma_f32 v10, v10, v12, v13"); e("v_fma_f32 v11, v11, v12, v13")
        e(f"v_cvt_pk_bf16_f32 v{16+r}, v10, v11")
    e("v_add_u32 v2, s3, v0"); e("v_lshrrev_b32 v3, 3, v2"); e("v_and_b32 v4, 7, v2")
    e("v_lshrrev_b32 v5, 5, v3"); e("v_mul_u32_u24 v5, 36864, v5"); e("v_and_b32 v6, 31, v3"); e("v_lshl_add_u32 v5, v6, 4, v5")
    e("v_and_b32 v6, 3, v4"); e("v_mul_u32_u24 v6, 9216, v6"); e("v_add_u32 v5, v5, v6"); e("v_lshrrev_b32 v6, 2, v4"); e("v_lshl_add_u32 v5, v6, 9, v5")
    for i in range(9):
        e(f"s_movk_i32 s40, {1024*i}"); e(f"buffer_store_dwordx4 v[{16+4*i}:{19+4*i}], v5, s[24:27], s40 offen")
    wgstamp(1,kb=0)
    e("ln_end:"); e("s_endpgm")
    e(kdesc("ln_kernel",72))
```

```python
from gen import *
def k0b():
    khead("ln_kernel")
    e("s_cmp_ge_u32 s2, 256"); e("s_cbranch_scc1 ln_end")
    e("s_load_dwordx4 s[4:7], s[0:1], 0"); e("s_load_dwordx2 s[12:13], s[0:1], 72"); e("s_load_dwordx4 s[8:11], s[0:1], 32")
    e("s_lshl_b32 s3, s2, 6"); e("v_add_u32 v2, s3, v0"); e("v_mul_u32_u24 v1, 144, v2")
    e("s_waitcnt lgkmcnt(0)")
    srd(20,4,2048*1152); e("s_add_u32 s40, s12, %d"%WS_XN); e("s_addc_u32 s41, s13, 0"); srd(24,40,2048*1152)
    for i in range(9): e(f"buffer_load_dwordx4 v[{16+4*i}:{19+4*i}], v1, s[20:23], 0 offen offset:{16*i}")
    NP=0
    if "lnx" in ABL:
        NP=3
        srd(44,6,576*1728*2); srd(48,8,576*4608*2); srd(52,10,576*4608*2)
        e("s_lshr_b32 s31, s2, 3"); e("s_lshl_b32 s31, s31, 6"); e("v_add_u32 v56, s31, v0"); e("s_and_b32 s32, s2, 7"); e("s_lshl_b32 s33, s32, 9"); e("s_lshl_b32 s34, s32, 8"); e("s_add_u32 s34, s34, 256")
        e("v_mul_u32_u24 v57, 7282, v56"); e("v_lshrrev_b32 v57, 22, v57"); e("v_mul_u32_u24 v58, 576, v57"); e("v_sub_u32 v58, v56, v58")
        e("v_mul_u32_u24 v56, 3456, v58"); e("v_lshl_add_u32 v56, v57, 7, v56")
        e("v_min_u32 v57, 2, v57"); e("v_mul_u32_u24 v58, 9216, v58"); e("v_lshl_add_u32 v58, v57, 7, v58")
        e("buffer_load_dword v59, v56, s[44:47], s33 offen"); e("buffer_load_dword v60, v58, s[48:51], s34 offen"); e("buffer_load_dword v61, v58, s[52:55], s34 offen")
    if "lnpf" in ABL:
        NP=3; CM=int(os.environ.get("CM","19"))
        srd(44,6,576*1728*2); srd(48,8,576*4608*2); srd(52,10,576*4608*2)
        e("v_lshlrev_b32 v56, 7, v2"); e("v_mul_u32_u24 v57, 7282, v2"); e("v_lshrrev_b32 v57, 22, v57"); e("v_mul_u32_u24 v58, 576, v57"); e("v_sub_u32 v58, v2, v58")
        e(f"v_min_u32 v57, {CM-1}, v57"); e("v_mul_u32_u24 v58, 9216, v58"); e("v_lshl_add_u32 v58, v57, 7, v58")
        e("buffer_load_dword v59, v56, s[44:47], 0 offen"); e("buffer_load_dword v60, v58, s[48:51], 0 offen"); e("buffer_load_dword v61, v58, s[52:55], 0 offen")
    e("v_lshrrev_b32 v3, 3, v2"); e("v_and_b32 v4, 7, v2")
    e("v_lshrrev_b32 v5, 5, v3"); e("v_mul_u32_u24 v5, 36864, v5"); e("v_and_b32 v6, 31, v3"); e("v_lshl_add_u32 v5, v6, 4, v5")
    e("v_and_b32 v6, 3, v4"); e("v_mul_u32_u24 v6, 9216, v6"); e("v_add_u32 v5, v5, v6"); e("v_lshrrev_b32 v6, 2, v4"); e("v_lshl_add_u32 v5, v6, 9, v5")
    e("s_mov_b32 s30, 0x3f803f80")
    for i in range(4): e(f"v_mov_b32 v{8+i}, 0")
    for i in range(9):
        e(f"s_waitcnt vmcnt({8-i+NP})")
        for j in range(4):
            r=16+4*i+j
            e(f"v_dot2c_f32_bf16 v{8+(j&1)}, s30, v{r}"); e(f"v_dot2c_f32_bf16 v{10+(j&1)}, v{r}, v{r}")
    e("s_nop 1"); e("v_add_f32 v8, v8, v9"); e("v_add_f32 v10, v10, v11")
    for off in (0x041F,0x081F,0x101F):
        e(f"ds_swizzle_b32 v9, v8 offset:{off}"); e(f"ds_swizzle_b32 v11, v10 offset:{off}"); e("s_waitcnt lgkmcnt(0)"); e("v_add_f32 v8, v8, v9"); e("v_add_f32 v10, v10, v11")
    e("v_mul_f32 v8, 0x3ae38e39, v8"); e("v_mov_b32 v13, 0x3727c5ac"); e("v_fmac_f32 v13, 0x3ae38e39, v10"); e("v_fma_f32 v13, -v8, v8, v13"); e("v_rsq_f32 v12, v13"); e("s_nop 0")
    e("v_mul_f32 v14, v8, v12"); e("v_sub_f32 v14, 0, v14"); e("v_mov_b32 v13, v12"); e("v_mov_b32 v15, v14")
    for i in range(9):
        for j in range(4):
            r=16+4*i+j; t=52+2*(j&1)
            e(f"v_lshlrev_b32 v{t}, 16, v{r}"); e(f"v_and_b32 v{t+1}, 0xffff0000, v{r}"); e(f"v_pk_fma_f32 v[{t}:{t+1}], v[{t}:{t+1}], v[12:13], v[14:15]")
            e(f"v_cvt_pk_bf16_f32 v{r}, v{t}, v{t+1}")
        e(f"s_movk_i32 s40, {1024*i}"); e(f"buffer_store_dwordx4 v[{16+4*i}:{19+4*i}], v5, s[24:27], s40 offen")
    e("ln_end:"); e("s_endpgm")
    e(kdesc("ln_kernel",64))
def k4b():
    khead("rd_kernel")
    e("s_cmp_ge_u32 s2, 576"); e("s_cbranch_scc1 rd_end")
    e("s_load_dwordx2 s[4:5], s[0:1], 0"); e("s_load_dwordx2 s[6:7], s[0:1], 56"); e("s_load_dwordx2 s[12:13], s[0:1], 72")
    e("s_lshl_b32 s3, s2, 8"); e("v_add_u32 v1, s3, v0"); e("v_lshlrev_b32 v3, 4, v1")
    e("s_waitcnt lgkmcnt(0)")
    srd(20,4,2048*576*2); srd(24,6,2048*576*2)
    e("s_add_u32 s40, s12, %d"%WS_P); e("s_addc_u32 s41, s13, 0"); srd(36,40,5*2048*576*4)
    e("buffer_load_dwordx4 v[4:7], v3, s[20:23], 0 offen")
    for p in range(5):
        e(f"s_mov_b32 s40, {p*2359296}"); e(f"buffer_load_dwordx4 v[{8+4*p}:{11+4*p}], v3, s[36:39], s40 offen")
    e("s_waitcnt vmcnt(5)")
    for j in range(4): e(f"v_lshlrev_b32 v{32+2*j}, 16, v{4+j}"); e(f"v_and_b32 v{33+2*j}, 0xffff0000, v{4+j}")
    for p in range(5):
        e(f"s_waitcnt vmcnt({4-p})")
        for j in range(4):
            t=28+2*(j&1)
            e(f"v_lshlrev_b32 v{t}, 16, v{8+4*p+j}"); e(f"v_and_b32 v{t+1}, 0xffff0000, v{8+4*p+j}"); e(f"v_pk_add_f32 v[{32+2*j}:{33+2*j}], v[{32+2*j}:{33+2*j}], v[{t}:{t+1}]")
    for j in range(4): e(f"v_cvt_pk_bf16_f32 v{4+j}, v{32+2*j}, v{33+2*j}")
    e("buffer_store_dwordx4 v[4:7], v3, s[24:27], 0 offen")
    e("rd_end:"); e("s_endpgm")
    e(kdesc("rd_kernel",40))
```

```python
from gen import *
def k2():
    khead("at_kernel")
    e("s_cmp_ge_u32 s2, 256"); e("s_cbranch_scc1 at_end")
    e("s_load_dwordx2 s[12:13], s[0:1], 72"); e("s_load_dwordx2 s[4:5], s[0:1], 16"); e("s_load_dwordx2 s[6:7], s[0:1], 48")
    e("s_and_b32 s16, s2, 31"); e("s_lshr_b32 s17, s2, 5")
    e("v_lshrrev_b32 v1, 6, v0"); e("s_nop 0"); e("v_readfirstlane_b32 s18, v1")
    e("v_and_b32 v2, 63, v0"); e("v_and_b32 v3, 31, v2"); e("v_lshrrev_b32 v4, 5, v2")
    e("s_waitcnt lgkmcnt(0)")
    e("s_add_u32 s40, s12, %d"%WS_QKV); e("s_addc_u32 s41, s13, 0"); srd(36,40,2048*LDQ)
    e("s_add_u32 s40, s12, %d"%WS_AH); e("s_addc_u32 s41, s13, 0"); srd(44,40,2048*LDA)
    e("s_mul_i32 s19, s16, 73728"); e("s_mul_i32 s22, s16, 36")
    KE=65536; VB=81920
    stamp(0); stamp(4,wv=4)
    e("s_mov_b32 s23, 2359296"); e("s_mov_b32 s24, 4718592")
    for it in range(4):
        R=32+12*it
        e(f"v_add_u32 v5, {512*it}, v0")
        e(f"v_mul_u32_u24 v6, 36, v5"); e("v_add_u32 v6, s19, v6")
        e(f"buffer_load_dwordx4 v[{R}:{R+3}], v6, s[36:39], s23 offen")
        e(f"buffer_load_dwordx4 v[{R+4}:{R+7}], v6, s[36:39], s23 offen offset:16")
        e(f"buffer_load_dword v{R+8}, v6, s[36:39], s23 offen offset:32")
        e(f"v_mov_b32 v{R+9}, 0x3f803f80")
    for it in range(4):
        R=140+12*it
        e(f"v_add_u32 v5, {512*it}, v0")
        e(f"v_mul_u32_u24 v6, 36, v5"); e("v_add_u32 v6, s19, v6")
        e(f"buffer_load_dwordx4 v[{R}:{R+3}], v6, s[36:39], s24 offen")
        e(f"buffer_load_dwordx4 v[{R+4}:{R+7}], v6, s[36:39], s24 offen offset:16")
        e(f"buffer_load_dword v{R+8}, v6, s[36:39], s24 offen offset:32")
    for it in range(4):
        R=32+12*it
        e(f"v_add_u32 v5, {512*it}, v0")
        e("v_lshlrev_b32 v7, 4, v5"); e("v_lshlrev_b32 v8, 3, v5"); e(f"v_add_u32 v8, {KE}, v8")
        e(f"s_waitcnt vmcnt({12+3*(3-it)})")
        e(f"ds_write_b128 v7, v[{R}:{R+3}]"); e(f"ds_write_b128 v7, v[{R+4}:{R+7}] offset:32768"); e(f"ds_write_b64 v8, v[{R+8}:{R+9}]")
    VW=[]
    for it in range(4):
        R=140+12*it; A=R+9
        VW+=[f"v_add_u32 v{A}, {512*it}, v0", f"v_lshrrev_b32 v{A+1}, 4, v{A}", f"v_mul_u32_u24 v{A+1}, 608, v{A+1}", f"v_bfe_u32 v{A+2}, v{A}, 2, 1", f"v_mul_u32_u24 v{A+2}, 304, v{A+2}", f"v_add_u32 v{A+1}, v{A+1}, v{A+2}",
             f"v_bfe_u32 v{A+2}, v{A}, 3, 1", f"v_and_b32 v{A}, 3, v{A}", f"v_lshl_add_u32 v{A}, v{A+2}, 2, v{A}", f"v_lshl_add_u32 v{A+1}, v{A}, 1, v{A+1}", f"v_add_u32 v{A+1}, {VB}, v{A+1}", f"v_mov_b32 v{A}, 0x3f80"]
        for d in range(18):
            r=R+d//2
            VW.append(f"ds_write_b16 v{A+1}, v{r} offset:{d*16}" if d%2==0 else f"ds_write_b16_d16_hi v{A+1}, v{r} offset:{d*16}")
        VW.append(f"ds_write_b16 v{A+1}, v{A} offset:{18*16}")
    e("s_waitcnt lgkmcnt(0)")
    e("s_lshl_b32 s20, s17, 8"); e("s_lshl_b32 s21, s18, 5"); e("s_add_u32 s20, s20, s21"); e("v_add_u32 v5, s20, v3")
    e("v_mul_u32_u24 v6, 36, v5"); e("v_add_u32 v6, s19, v6"); e("v_lshl_add_u32 v7, v4, 4, v6")
    e("buffer_load_dwordx4 v[40:43], v7, s[36:39], 0 offen")
    e("buffer_load_dword v44, v6, s[36:39], 0 offen offset:32")
    e("v_mov_b32 v45, 0")
    e("v_lshlrev_b32 v10, 4, v3"); e("v_lshl_add_u32 v10, v4, 15, v10")
    e(f"v_lshlrev_b32 v11, 3, v3"); e(f"v_add_u32 v11, {KE}, v11")
    e("v_min_u32 v12, 18, v3"); e("v_lshlrev_b32 v12, 4, v12"); e("v_mul_u32_u24 v13, 304, v4"); e("v_add_u32 v12, v12, v13"); e(f"v_add_u32 v12, {VB}, v12"); e("v_add_u32 v13, 38912, v12")
    e("s_waitcnt vmcnt(0) lgkmcnt(0)")
    e("v_cmp_eq_u32 vcc, 0, v4"); e("s_nop 1"); e("v_cndmask_b32 v44, 0, v44, vcc")
    e("s_barrier")
    if "nopf2" not in ABL:
        srd(48,4,576*576*2); srd(52,6,4608*576*2)
        e("s_lshr_b32 s25, s2, 3"); e("s_lshl_b32 s25, s25, 9"); e("v_add_u32 v15, s25, v0")
        e("v_lshrrev_b32 v16, 12, v15"); e("v_and_b32 v15, 4095, v15")
        e("s_and_b32 s25, s2, 7"); e("s_lshl_b32 s25, s25, 1"); e("v_add_u32 v17, s25, v16")
        e("v_cmp_gt_u32 vcc, 2, v16"); e("v_cmp_gt_u32 s[26:27], 15, v17"); e("s_and_b64 vcc, vcc, s[26:27]"); e("s_movk_i32 s25, 3264"); e("v_cmp_gt_u32 s[26:27], s25, v15"); e("s_and_b64 vcc, vcc, s[26:27]")
        e("v_mul_u32_u24 v16, 21846, v17"); e("v_lshrrev_b32 v16, 16, v16"); e("v_mul_u32_u24 v18, 3, v16"); e("v_sub_u32 v17, v17, v18")
        e("v_lshlrev_b32 v18, 10, v16"); e("v_min_u32 v16, 1, v16"); e("v_lshl_add_u32 v18, v16, 6, v18")
        e("v_mul_u32_u24 v16, 21846, v15"); e("v_lshrrev_b32 v16, 16, v16"); e("v_mul_u32_u24 v19, 3, v16"); e("v_sub_u32 v15, v15, v19")
        e("v_add_u32 v18, v18, v16"); e("v_mul_u32_u24 v16, 1152, v18"); e("v_mul_u32_u24 v17, 384, v17"); e("v_lshl_add_u32 v15, v15, 7, v17"); e("v_add_u32 v16, v16, v15")
        e("v_mov_b32 v19, 0x7fffff00"); e("v_cndmask_b32 v16, v19, v16, vcc")
        e("s_movk_i32 s25, 576"); e("v_cmp_gt_u32 vcc, s25, v18"); e("v_cndmask_b32 v15, v19, v16, vcc"); e("v_subrev_u32 v16, 663552, v16"); e("v_cndmask_b32 v16, v16, v19, vcc")
        e("buffer_load_dword v188, v15, s[48:51], 0 offen"); e("buffer_load_dword v189, v16, s[52:55], 0 offen")
        if "pf3" in ABL:
            e("s_lshr_b32 s25, s2, 3"); e("s_lshl_b32 s25, s25, 9"); e("v_add_u32 v15, s25, v0")
            e("v_lshrrev_b32 v16, 13, v15"); e("v_and_b32 v15, 8191, v15")
            e("s_and_b32 s25, s2, 7"); e("s_lshl_b32 s25, s25, 1"); e("v_add_u32 v17, s25, v16")
            e("v_mul_u32_u24 v16, 21846, v17"); e("v_lshrrev_b32 v16, 16, v16")
            e("v_cmp_gt_u32 vcc, 15, v17"); e("v_cmp_lt_u32 s[26:27], 0, v16"); e("s_and_b64 vcc, vcc, s[26:27]")
            e("v_lshlrev_b32 v18, 11, v16"); e("v_add_u32 v18, 128, v18")
            e("v_lshrrev_b32 v16, 2, v15"); e("v_and_b32 v15, 3, v15"); e("v_lshl_add_u32 v18, v15, 7, v18"); e(f"s_movk_i32 s25, {LDA}"); e("v_mul_lo_u32 v16, v16, s25"); e("v_add_u32 v16, v16, v18")
            e("v_cndmask_b32 v16, v19, v16, vcc"); e("buffer_load_dword v190, v16, s[44:47], 0 offen")
        e("v_cmp_eq_u32 vcc, 0, v4")
    S=[64,80]; KF=[48,56]; PF=96; VF=[104,112]; O=120; MX=14
    def rdk(t,b):
        e(f"ds_read_b128 v[{KF[b]}:{KF[b]+3}], v10 offset:{t*512}"); e(f"ds_read_b64 v[{KF[b]+4}:{KF[b]+5}], v11 offset:{t*256}")
    def qk(b):
        e(f"v_mfma_f32_32x32x16_bf16 v[{S[b]}:{S[b]+15}], v[{KF[b]}:{KF[b]+3}], v[40:43], 0")
        e(f"v_mfma_f32_32x32x8_bf16 v[{S[b]}:{S[b]+15}], v[{KF[b]+4}:{KF[b]+5}], v[44:45], v[{S[b]}:{S[b]+15}]")
    def mx(b):
        for i in range(8): e(f"v_max3_f32 v{MX}, v{MX}, v{S[b]+2*i}, v{S[b]+2*i+1}")
    stamp(1); stamp(5,wv=4)
    e(f"v_mov_b32 v{MX}, 0xff800000")
    rdk(0,0)
    for t in range(64):
        b=t&1
        if t==32: assert not VW; e("s_waitcnt lgkmcnt(0)"); e("s_barrier")
        if t<63: rdk(t+1,b^1); e("s_waitcnt lgkmcnt(2)")
        else: e("s_waitcnt lgkmcnt(0)")
        e(f"v_mfma_f32_32x32x16_bf16 v[{S[b]}:{S[b]+15}], v[{KF[b]}:{KF[b]+3}], v[40:43], 0")
        if t>0:
            for i in range(4): e(f"v_max3_f32 v{MX}, v{MX}, v{S[b^1]+2*i}, v{S[b^1]+2*i+1}")
        for _ in range(3):
            if VW: e(VW.pop(0))
        e(f"v_mfma_f32_32x32x8_bf16 v[{S[b]}:{S[b]+15}], v[{KF[b]+4}:{KF[b]+5}], v[44:45], v[{S[b]}:{S[b]+15}]")
        if t>0:
            for i in range(4,8): e(f"v_max3_f32 v{MX}, v{MX}, v{S[b^1]+2*i}, v{S[b^1]+2*i+1}")
        for _ in range(3):
            if VW: e(VW.pop(0))
    e("s_nop 15"); mx(1)
    e(f"v_mov_b32 v15, v{MX}"); e("s_nop 1"); e(f"v_permlane32_swap_b32 v{MX}, v15"); e("s_nop 1"); e(f"v_max_f32 v{MX}, v{MX}, v15")
    e(f"v_sub_f32 v15, 0, v{MX}"); e("v_cvt_pk_bf16_f32 v16, v15, v15"); e("v_lshlrev_b32 v17, 16, v16"); e("v_sub_f32 v17, v15, v17"); e("v_cvt_pk_bf16_f32 v17, v17, v17")
    e("v_and_b32 v16, 0xffff, v16"); e("v_lshl_or_b32 v16, v17, 16, v16"); e("v_cndmask_b32 v45, 0, v16, vcc")
    for i in range(16): e(f"v_mov_b32 v{O+i}, 0")
    stamp(2); stamp(6,wv=4)
    def rdv(t,b):
        for g in range(2):
            G=2*t+g; r,o=(12,G*608) if G<64 else (13,(G-64)*608)
            e(f"ds_read_b128 v[{VF[b]+4*g}:{VF[b]+4*g+3}], v{r} offset:{o}")
    def sm(b):
        for i in range(16): e(f"v_exp_f32 v{S[b]+i}, v{S[b]+i}")
        for i in range(8): e(f"v_cvt_pk_bf16_f32 v{PF+i}, v{S[b]+2*i}, v{S[b]+2*i+1}")
    def pv(b):
        for g in range(2): e(f"v_mfma_f32_32x32x16_bf16 v[{O}:{O+15}], v[{VF[b]+4*g}:{VF[b]+4*g+3}], v[{PF+4*g}:{PF+4*g+3}], v[{O}:{O+15}]")
    PFB=[PF,140]
    rdk(0,0); rdk(1,1); e("s_waitcnt lgkmcnt(2)"); qk(0)
    for t in range(65):
        b=t&1
        e("s_waitcnt lgkmcnt(0)")
        M=[]
        if t<63:
            M.append(f"v_mfma_f32_32x32x16_bf16 v[{S[b^1]}:{S[b^1]+15}], v[{KF[b^1]}:{KF[b^1]+3}], v[40:43], 0")
            M.append(f"v_mfma_f32_32x32x8_bf16 v[{S[b^1]}:{S[b^1]+15}], v[{KF[b^1]+4}:{KF[b^1]+5}], v[44:45], v[{S[b^1]}:{S[b^1]+15}]")
        if t>0:
            for g_ in range(2): M.append(f"v_mfma_f32_32x32x16_bf16 v[{O}:{O+15}], v[{VF[b^1]+4*g_}:{VF[b^1]+4*g_+3}], v[{PFB[b^1]+4*g_}:{PFB[b^1]+4*g_+3}], v[{O}:{O+15}]")
        if t==0: e("s_nop 7")
        if t<64:
            for i in range(16):
                if i%4==0 and M: e(M.pop(0))
                if i==6 and t+2<64: rdk(t+2,b)
                if i==10: rdv(t,b)
                e(f"v_exp_f32 v{S[b]+i}, v{S[b]+i}")
            for i in range(8): e(f"v_cvt_pk_bf16_f32 v{PFB[b]+i}, v{S[b]+2*i}, v{S[b]+2*i+1}")
        for z in M: e(z)
    e("s_nop 15")
    e(f"v_mov_b32 v15, v{O+10}"); e(f"v_mov_b32 v16, v{O+10}"); e("s_nop 1"); e("v_permlane32_swap_b32 v15, v16"); e("s_nop 1")
    e("v_rcp_f32 v15, v15"); e("s_nop 0")
    for i in range(10): e(f"v_mul_f32 v{O+i}, v{O+i}, v15")
    for i in range(5): e(f"v_cvt_pk_bf16_f32 v{O+i}, v{O+2*i}, v{O+2*i+1}")
    e(f"s_movk_i32 s42, {LDA}"); e("v_mul_lo_u32 v6, v5, s42"); e("v_add_u32 v6, s22, v6"); e("v_lshl_add_u32 v7, v4, 3, v6")
    e("v_lshl_add_u32 v8, v4, 30, v6")
    e(f"buffer_store_dwordx2 v[{O}:{O+1}], v7, s[44:47], 0 offen"); e(f"buffer_store_dwordx2 v[{O+2}:{O+3}], v7, s[44:47], 0 offen offset:16")
    e(f"buffer_store_dword v{O+4}, v8, s[44:47], 0 offen offset:32")
    stamp(3); stamp(7,wv=4)
    e("at_end:"); e("s_endpgm")
    e(kdesc("at_kernel",256 if "stamp" in ABL else 192))
```

```python
from gen import *
def k3():
    khead("g2_kernel")
    e("s_cmp_ge_u32 s2, 256"); e("s_cbranch_scc1 g2_end")
    e("s_load_dwordx2 s[4:5], s[0:1], 16"); e("s_load_dwordx2 s[6:7], s[0:1], 48"); e("s_load_dwordx2 s[12:13], s[0:1], 72")
    e("s_and_b32 s14, s2, 7"); e("s_lshr_b32 s15, s2, 3"); e("s_and_b32 s16, s15, 15"); e("s_lshr_b32 s15, s15, 4"); e("s_lshl_b32 s14, s14, 1"); e("s_add_u32 s15, s14, s15")
    e("s_cmp_ge_u32 s15, 15"); e("s_cbranch_scc1 g2_end")
    e("s_mul_i32 s14, s15, 21846"); e("s_lshr_b32 s14, s14, 16"); e("s_mul_i32 s17, s14, 3"); e("s_sub_u32 s17, s15, s17")
    e("v_lshrrev_b32 v1, 6, v0"); e("s_nop 0"); e("v_readfirstlane_b32 s18, v1")
    e("v_and_b32 v2, 63, v0"); e("v_and_b32 v3, 31, v2"); e("v_lshrrev_b32 v4, 5, v2")
    e("s_waitcnt lgkmcnt(0)")
    srd(20,4,576*576*2); srd(24,6,4608*576*2)
    wgstamp(0,kb=3)
    e("s_add_u32 s40, s12, %d"%WS_AH); e("s_addc_u32 s41, s13, 0"); srd(44,40,2048*LDA)
    e("s_add_u32 s40, s12, %d"%WS_P); e("s_addc_u32 s41, s13, 0"); srd(36,40,5*2048*576*4)
    e("s_lshl_b32 s50, s14, 4"); e("s_min_u32 s51, s14, 1"); e("s_add_u32 s50, s50, s51"); e("s_lshl_b32 s51, s14, 4"); e("s_add_u32 s51, s51, 17")
    e("s_and_b32 s71, s18, 3"); e("s_lshr_b32 s72, s18, 2")
    e("s_lshl_b32 s19, s16, 7"); e("s_lshl_b32 s40, s71, 5"); e("s_add_u32 s40, s19, s40"); e("v_add_u32 v5, s40, v3")
    e(f"s_movk_i32 s42, {LDA}")
    e("s_mul_i32 s40, s18, 12"); e("s_mul_i32 s41, s17, 384")
    e("v_bfe_u32 v7, v2, 2, 2"); e("v_and_b32 v8, 3, v2"); e("v_lshlrev_b32 v8, 4, v8"); e("v_add_u32 v8, s41, v8")
    for t in range(3):
        e("v_lshrrev_b32 v9, 4, v2"); e(f"v_add_u32 v9, {4*t}, v9"); e("v_add_u32 v9, s40, v9")
        e("v_mul_u32_u24 v16, 43, v9"); e("v_lshrrev_b32 v16, 8, v16"); e("v_mul_u32_u24 v17, 6, v16"); e("v_sub_u32 v17, v9, v17")
        e("v_lshl_add_u32 v16, v16, 2, v7"); e("v_mul_u32_u24 v16, 1152, v16"); e(f"v_lshl_add_u32 v16, v17, 6, v16"); e(f"v_add_u32 v{10+t}, v16, v8")
    e("v_mul_u32_u24 v16, 3072, v4"); e("v_lshl_add_u32 v16, v7, 6, v16"); e("v_bfe_u32 v17, v2, 4, 1"); e("v_lshl_add_u32 v16, v17, 5, v16"); e("v_and_b32 v17, 3, v2"); e("v_lshl_add_u32 v16, v17, 3, v16")
    e("s_mul_i32 s40, s72, 768"); e("v_add_u32 v16, s40, v16")
    e("s_mul_i32 s52, s18, 3072")
    ACC=20; SL=40960; RS=[68,132]; AA=196
    for i in range(48): e(f"v_mov_b32 v{ACC+i}, 0")
    e("s_sub_u32 s69, s51, 1")
    e("s_lshl_b32 s40, s18, 4"); e("s_add_u32 s40, s19, s40")
    e("v_lshrrev_b32 v7, 3, v2"); e("v_add_u32 v9, s40, v7"); e("v_mul_lo_u32 v6, v9, s42"); e("v_and_b32 v9, 7, v2"); e("v_xor_b32 v9, v9, v7"); e("v_lshl_add_u32 v6, v9, 4, v6")
    e("s_lshl_b32 s70, s18, 11"); e("s_add_u32 s70, s70, 24576")
    e("s_lshl_b32 s73, s71, 12"); e("s_add_u32 s73, s73, 24576")
    e("v_and_b32 v9, 7, v3"); e("v_lshlrev_b32 v7, 7, v3"); e("v_add_u32 v7, s73, v7")
    for st in range(4):
        e(f"v_add_u32 v8, {2*st}, v4"); e("v_xor_b32 v8, v8, v9"); e(f"v_lshl_add_u32 v{AA+st}, v8, 4, v7")
    for sl in range(4):
        for st in range(4): e(f"v_add_u32 v{200+4*sl+st}, {sl*SL}, v{AA+st}")
        e(f"v_add_u32 v{216+sl}, {sl*SL}, v16")
    def stage_setup(creg):
        e(f"s_min_u32 s62, s{creg}, s69")
        e(f"s_cmp_lt_u32 s62, 9"); e("s_cselect_b32 s56, s20, s24"); e("s_cselect_b32 s57, s21, s25"); e("s_cselect_b32 s58, s22, s26"); e("s_mov_b32 s59, s23")
        e(f"s_cselect_b32 s60, 0, 9"); e(f"s_sub_u32 s60, s62, s60"); e("s_mul_i32 s60, s60, 73728"); e(f"s_lshl_b32 s63, s62, 7"); e(f"s_add_u32 s61, s63, {8*LDA}")
    def stage_list(buf):
        L=[]
        for t in range(3): L.append([f"s_add_u32 m0, s52, {buf*SL+t*1024}","s_nop 0",f"buffer_load_dwordx4 v{10+t}, s[56:59], s60 offen lds"])
        for t in range(2): L.append([f"s_add_u32 m0, s70, {buf*SL+t*1024}","s_nop 0",f"buffer_load_dwordx4 v6, s[44:47], s{63 if t==0 else 61} offen lds"])
        return L
    def reads(buf,rs):
        R=RS[rs]; L=[]
        for s_ in range(4):
            L.append(f"ds_read_b128 v[{R+4*s_}:{R+4*s_+3}], v{200+4*buf+s_}")
            p=R+16+s_*12
            for nb in range(3):
                for q in range(2): L.append(f"ds_read_b64_tr_b16 v[{p+nb*4+q*2}:{p+nb*4+q*2+1}], v{216+buf} offset:{((4*s_+q)*6+nb)*256}")
        return L
    def compute(rs,rd,dma):
        R=RS[rs]; k=0
        for s_ in range(4):
            p=R+16+s_*12
            for nb in range(3):
                e(f"v_mfma_f32_32x32x16_bf16 v[{ACC+16*nb}:{ACC+16*nb+15}], v[{p+nb*4}:{p+nb*4+3}], v[{R+4*s_}:{R+4*s_+3}], v[{ACC+16*nb}:{ACC+16*nb+15}]")
                if dma and k%2==0:
                    for z in dma.pop(0): e(z)
                for _ in range(3):
                    if rd: e(rd.pop(0))
                k+=1
    e("s_mov_b32 s53, s50")
    for i in range(4):
        e(f"s_add_u32 s54, s53, {i}"); stage_setup(54)
        for l in stage_list(i):
            for z in l: e(z)
    e("s_waitcnt vmcnt(15)"); e("s_barrier")
    for z in reads(0,0): e(z)
    e("g2_loop:")
    for buf in range(4):
        e("s_add_u32 s54, s53, 4"); stage_setup(54)
        e("s_waitcnt vmcnt(10) lgkmcnt(0)"); e("s_barrier")
        compute(buf&1,reads((buf+1)&3,(buf+1)&1),stage_list(buf))
        e("s_add_u32 s53, s53, 1"); e("s_cmp_lt_u32 s53, s51"); e("s_cbranch_scc0 g2_fin")
    e("s_branch g2_loop")
    e("g2_fin:"); e("s_nop 15")
    e("s_waitcnt vmcnt(0) lgkmcnt(0)"); e("s_barrier")
    e("s_lshl_b32 s40, s71, 5"); e("v_add_u32 v6, s40, v3"); e("v_mul_u32_u24 v6, 400, v6"); e("v_lshl_add_u32 v6, v4, 3, v6"); e("s_mul_i32 s55, s72, 192"); e("v_add_u32 v6, s55, v6")
    for nb in range(3):
        for q in range(4):
            r=ACC+16*nb+4*q
            e(f"v_cvt_pk_bf16_f32 v{r}, v{r}, v{r+1}"); e(f"v_cvt_pk_bf16_f32 v{r+1}, v{r+2}, v{r+3}")
            e(f"ds_write_b64 v6, v[{r}:{r+1}] offset:{nb*64+q*16}")
    e("s_mul_i32 s54, s14, 2359296"); e("s_mul_i32 s55, s17, 384"); e("s_add_u32 s54, s54, s55"); e("s_mul_i32 s55, s19, 1152"); e("s_add_u32 s54, s54, s55")
    for k in range(6):
        e(f"v_add_u32 v8, {512*k}, v0"); e("v_mul_u32_u24 v9, 2731, v8"); e("v_lshrrev_b32 v9, 16, v9"); e("v_mul_u32_u24 v10, 24, v9"); e("v_sub_u32 v10, v8, v10"); e("v_lshlrev_b32 v10, 4, v10")
        e(f"v_mul_u32_u24 v{70+k}, 400, v9"); e(f"v_add_u32 v{70+k}, v{70+k}, v10"); e(f"v_mul_u32_u24 v{80+k}, 1152, v9"); e(f"v_add_u32 v{80+k}, v{80+k}, v10")
    e("s_waitcnt lgkmcnt(0)"); e("s_barrier")
    for k in range(6): e(f"ds_read_b128 v[{100+4*k}:{103+4*k}], v{70+k}")
    for k in range(6):
        e(f"s_waitcnt lgkmcnt({5-k})"); e(f"buffer_store_dwordx4 v[{100+4*k}:{103+4*k}], v{80+k}, s[36:39], s54 offen")
    e("s_waitcnt vmcnt(0)"); wgstamp(1,kb=3); wgstamp(2,kb=3,wv=4); wgstamp(3,kb=3,wv=7)
    e("g2_end:"); e("s_endpgm")
    e(kdesc("g2_kernel",224))
def k4():
    khead("rd_kernel")
    e("s_cmp_ge_u32 s2, 1152"); e("s_cbranch_scc1 rd_end")
    e("s_load_dwordx2 s[4:5], s[0:1], 0"); e("s_load_dwordx2 s[6:7], s[0:1], 56"); e("s_load_dwordx2 s[12:13], s[0:1], 72")
    e("v_lshrrev_b32 v2, 6, v0"); e("s_nop 0"); e("v_readfirstlane_b32 s18, v2"); wgstamp(0,kb=4)
    e("s_lshl_b32 s3, s2, 8"); e("v_add_u32 v1, s3, v0"); e("v_lshlrev_b32 v2, 4, v1"); e("v_lshlrev_b32 v3, 3, v1")
    e("s_waitcnt lgkmcnt(0)")
    srd(20,4,2048*576*2); srd(24,6,2048*576*2)
    e("s_add_u32 s40, s12, %d"%WS_P); e("s_addc_u32 s41, s13, 0"); srd(36,40,5*2048*576*4)
    e("buffer_load_dwordx2 v[4:5], v3, s[20:23], 0 offen")
    for p in range(5):
        e(f"s_mov_b32 s40, {p*2359296}"); e(f"buffer_load_dwordx2 v[{8+2*p}:{9+2*p}], v3, s[36:39], s40 offen")
    e("s_waitcnt vmcnt(0)")
    e("v_lshlrev_b32 v28, 16, v4"); e("v_and_b32 v29, 0xffff0000, v4"); e("v_lshlrev_b32 v30, 16, v5"); e("v_and_b32 v31, 0xffff0000, v5")
    for p in range(5):
        for j in range(2):
            e(f"v_lshlrev_b32 v20, 16, v{8+2*p+j}"); e(f"v_and_b32 v21, 0xffff0000, v{8+2*p+j}"); e(f"v_add_f32 v{28+2*j}, v{28+2*j}, v20"); e(f"v_add_f32 v{29+2*j}, v{29+2*j}, v21")
    e("v_cvt_pk_bf16_f32 v4, v28, v29"); e("v_cvt_pk_bf16_f32 v5, v30, v31")
    e("buffer_store_dwordx2 v[4:5], v3, s[24:27], 0 offen")
    wgstamp(1,kb=4)
    e("rd_end:"); e("s_endpgm")
    e(kdesc("rd_kernel",32))
```

```python
from gen11 import *
from gen2 import *
from gen3 import *
hdr=open("cdna_kernels/%s.s.ref"%NAME).read().split("; Override")[0]
launches=["; @launch kernel=ln_kernel grid=(256,1,1) block=(64,1,1) lds=0","; @launch kernel=g1_kernel grid=(256,1,1) block=(512,1,1) lds=163840","; @launch kernel=at_kernel grid=(256,1,1) block=(512,1,1) lds=159744","; @launch kernel=g2_kernel grid=(256,1,1) block=(512,1,1) lds=163840","; @launch kernel=rd_kernel grid=(576,1,1) block=(256,1,1) lds=0"]
e('.amdgcn_target "amdgcn-amd-amdhsa--gfx950"'); e(".text")
k0b(); k1(); k2(); k3(); k4b()
open(sys.argv[1],"w").write(hdr+"\n".join(launches)+"\n"+"\n".join(out)+"\n")
```

```python
from gen import *
def k0b():
    khead("ln_kernel")
    e("s_cmp_ge_u32 s2, 256"); e("s_cbranch_scc1 ln_end")
    e("s_load_dwordx4 s[4:7], s[0:1], 0"); e("s_load_dwordx2 s[12:13], s[0:1], 72"); e("s_load_dwordx4 s[8:11], s[0:1], 32")
    e("s_lshl_b32 s3, s2, 6"); e("v_add_u32 v2, s3, v0"); e("v_mul_u32_u24 v1, 144, v2")
    e("s_waitcnt lgkmcnt(0)")
    srd(20,4,2048*1152); e("s_add_u32 s40, s12, %d"%WS_XN); e("s_addc_u32 s41, s13, 0"); srd(24,40,2048*1152)
    for i in range(9): e(f"buffer_load_dwordx4 v[{16+4*i}:{19+4*i}], v1, s[20:23], 0 offen offset:{16*i}")
    NP=0
    if "lnx" in ABL:
        NP=3
        srd(44,6,576*1728*2); srd(48,8,576*4608*2); srd(52,10,576*4608*2)
        e("s_lshr_b32 s31, s2, 3"); e("s_lshl_b32 s31, s31, 6"); e("v_add_u32 v56, s31, v0"); e("s_and_b32 s32, s2, 7"); e("s_lshl_b32 s33, s32, 9"); e("s_lshl_b32 s34, s32, 8"); e("s_add_u32 s34, s34, 256")
        if "tlb" in ABL:
            NP=6
            e("s_load_dwordx4 s[60:63], s[0:1], 48"); e("v_lshlrev_b32 v62, 15, v56"); e("v_lshlrev_b32 v63, 12, v56"); srd(56,12,0x4000000); e("s_waitcnt lgkmcnt(0)"); srd(64,60,4608*576*2); srd(68,62,2048*576*2)
            e("buffer_load_dword v64, v62, s[56:59], 0 offen"); e("buffer_load_dword v65, v63, s[64:67], 0 offen"); e("buffer_load_dword v66, v63, s[68:71], 0 offen")
        e("v_mul_u32_u24 v57, 7282, v56"); e("v_lshrrev_b32 v57, 22, v57"); e("v_mul_u32_u24 v58, 576, v57"); e("v_sub_u32 v58, v56, v58")
        e("v_mul_u32_u24 v56, 3456, v58"); e("v_lshl_add_u32 v56, v57, 7, v56")
        e("v_min_u32 v57, 2, v57"); e("v_mul_u32_u24 v58, 9216, v58"); e("v_lshl_add_u32 v58, v57, 7, v58")
        e("buffer_load_dword v59, v56, s[44:47], s33 offen"); e("buffer_load_dword v60, v58, s[48:51], s34 offen"); e("buffer_load_dword v61, v58, s[52:55], s34 offen")
    if "lnpf" in ABL:
        NP=3; CM=int(os.environ.get("CM","19"))
        srd(44,6,576*1728*2); srd(48,8,576*4608*2); srd(52,10,576*4608*2)
        e("v_lshlrev_b32 v56, 7, v2"); e("v_mul_u32_u24 v57, 7282, v2"); e("v_lshrrev_b32 v57, 22, v57"); e("v_mul_u32_u24 v58, 576, v57"); e("v_sub_u32 v58, v2, v58")
        e(f"v_min_u32 v57, {CM-1}, v57"); e("v_mul_u32_u24 v58, 9216, v58"); e("v_lshl_add_u32 v58, v57, 7, v58")
        e("buffer_load_dword v59, v56, s[44:47], 0 offen"); e("buffer_load_dword v60, v58, s[48:51], 0 offen"); e("buffer_load_dword v61, v58, s[52:55], 0 offen")
    e("v_lshrrev_b32 v3, 3, v2"); e("v_and_b32 v4, 7, v2")
    e("v_lshrrev_b32 v5, 5, v3"); e("v_mul_u32_u24 v5, 36864, v5"); e("v_and_b32 v6, 31, v3"); e("v_lshl_add_u32 v5, v6, 4, v5")
    e("v_and_b32 v6, 3, v4"); e("v_mul_u32_u24 v6, 9216, v6"); e("v_add_u32 v5, v5, v6"); e("v_lshrrev_b32 v6, 2, v4"); e("v_lshl_add_u32 v5, v6, 9, v5")
    e("s_mov_b32 s30, 0x3f803f80")
    for i in range(4): e(f"v_mov_b32 v{8+i}, 0")
    for i in range(9):
        e(f"s_waitcnt vmcnt({8-i+NP})")
        for j in range(4):
            r=16+4*i+j
            e(f"v_dot2c_f32_bf16 v{8+(j&1)}, s30, v{r}"); e(f"v_dot2c_f32_bf16 v{10+(j&1)}, v{r}, v{r}")
    e("s_nop 1"); e("v_add_f32 v8, v8, v9"); e("v_add_f32 v10, v10, v11")
    for off in (0x041F,0x081F,0x101F):
        e(f"ds_swizzle_b32 v9, v8 offset:{off}"); e(f"ds_swizzle_b32 v11, v10 offset:{off}"); e("s_waitcnt lgkmcnt(0)"); e("v_add_f32 v8, v8, v9"); e("v_add_f32 v10, v10, v11")
    e("v_mul_f32 v8, 0x3ae38e39, v8"); e("v_mov_b32 v13, 0x3727c5ac"); e("v_fmac_f32 v13, 0x3ae38e39, v10"); e("v_fma_f32 v13, -v8, v8, v13"); e("v_rsq_f32 v12, v13"); e("s_nop 0")
    e("v_mul_f32 v14, v8, v12"); e("v_sub_f32 v14, 0, v14"); e("v_mov_b32 v13, v12"); e("v_mov_b32 v15, v14")
    for i in range(9):
        for j in range(4):
            r=16+4*i+j; t=52+2*(j&1)
            e(f"v_lshlrev_b32 v{t}, 16, v{r}"); e(f"v_and_b32 v{t+1}, 0xffff0000, v{r}"); e(f"v_pk_fma_f32 v[{t}:{t+1}], v[{t}:{t+1}], v[12:13], v[14:15]")
            e(f"v_cvt_pk_bf16_f32 v{r}, v{t}, v{t+1}")
        e(f"s_movk_i32 s40, {1024*i}"); e(f"buffer_store_dwordx4 v[{16+4*i}:{19+4*i}], v5, s[24:27], s40 offen")
    e("ln_end:"); e("s_endpgm")
    e(kdesc("ln_kernel",72))
def k4b():
    khead("rd_kernel")
    e("s_cmp_ge_u32 s2, 576"); e("s_cbranch_scc1 rd_end")
    e("s_load_dwordx2 s[4:5], s[0:1], 0"); e("s_load_dwordx2 s[6:7], s[0:1], 56"); e("s_load_dwordx2 s[12:13], s[0:1], 72")
    e("s_lshl_b32 s3, s2, 8"); e("v_add_u32 v1, s3, v0"); e("v_lshlrev_b32 v3, 4, v1")
    e("s_waitcnt lgkmcnt(0)")
    srd(20,4,2048*576*2); srd(24,6,2048*576*2)
    e("s_add_u32 s40, s12, %d"%WS_P); e("s_addc_u32 s41, s13, 0"); srd(36,40,5*2048*576*4)
    e("buffer_load_dwordx4 v[4:7], v3, s[20:23], 0 offen")
    for p in range(5):
        e(f"s_mov_b32 s40, {p*2359296}"); e(f"buffer_load_dwordx4 v[{8+4*p}:{11+4*p}], v3, s[36:39], s40 offen")
    e("s_waitcnt vmcnt(5)")
    for j in range(4): e(f"v_lshlrev_b32 v{32+2*j}, 16, v{4+j}"); e(f"v_and_b32 v{33+2*j}, 0xffff0000, v{4+j}")
    for p in range(5):
        e(f"s_waitcnt vmcnt({4-p})")
        for j in range(4):
            t=28+2*(j&1)
            e(f"v_lshlrev_b32 v{t}, 16, v{8+4*p+j}"); e(f"v_and_b32 v{t+1}, 0xffff0000, v{8+4*p+j}"); e(f"v_pk_add_f32 v[{32+2*j}:{33+2*j}], v[{32+2*j}:{33+2*j}], v[{t}:{t+1}]")
    for j in range(4): e(f"v_cvt_pk_bf16_f32 v{4+j}, v{32+2*j}, v{33+2*j}")
    e("buffer_store_dwordx4 v[4:7], v3, s[24:27], 0 offen")
    e("rd_end:"); e("s_endpgm")
    e(kdesc("rd_kernel",40))
```

```python
from gen import *
def k2():
    khead("at_kernel")
    e("s_cmp_ge_u32 s2, 256"); e("s_cbranch_scc1 at_end")
    e("s_load_dwordx2 s[12:13], s[0:1], 72"); e("s_load_dwordx2 s[4:5], s[0:1], 16"); e("s_load_dwordx2 s[6:7], s[0:1], 48")
    e("s_and_b32 s16, s2, 31"); e("s_lshr_b32 s17, s2, 5")
    e("v_lshrrev_b32 v1, 6, v0"); e("s_nop 0"); e("v_readfirstlane_b32 s18, v1")
    e("v_and_b32 v2, 63, v0"); e("v_and_b32 v3, 31, v2"); e("v_lshrrev_b32 v4, 5, v2")
    e("s_waitcnt lgkmcnt(0)")
    e("s_add_u32 s40, s12, %d"%WS_QKV); e("s_addc_u32 s41, s13, 0"); srd(36,40,2048*LDQ)
    e("s_add_u32 s40, s12, %d"%WS_AH); e("s_addc_u32 s41, s13, 0"); srd(44,40,2048*LDA)
    e("s_mul_i32 s19, s16, 73728"); e("s_mul_i32 s22, s16, 36")
    KE=65536; VB=81920
    stamp(0); stamp(4,wv=4)
    e("s_mov_b32 s23, 2359296"); e("s_mov_b32 s24, 4718592")
    for it in range(4):
        R=32+12*it
        e(f"v_add_u32 v5, {512*it}, v0")
        e(f"v_mul_u32_u24 v6, 36, v5"); e("v_add_u32 v6, s19, v6")
        e(f"buffer_load_dwordx4 v[{R}:{R+3}], v6, s[36:39], s23 offen")
        e(f"buffer_load_dwordx4 v[{R+4}:{R+7}], v6, s[36:39], s23 offen offset:16")
        e(f"buffer_load_dword v{R+8}, v6, s[36:39], s23 offen offset:32")
        e(f"v_mov_b32 v{R+9}, 0x3f803f80")
    for it in range(4):
        R=140+12*it
        e(f"v_add_u32 v5, {512*it}, v0")
        e(f"v_mul_u32_u24 v6, 36, v5"); e("v_add_u32 v6, s19, v6")
        e(f"buffer_load_dwordx4 v[{R}:{R+3}], v6, s[36:39], s24 offen")
        e(f"buffer_load_dwordx4 v[{R+4}:{R+7}], v6, s[36:39], s24 offen offset:16")
        e(f"buffer_load_dword v{R+8}, v6, s[36:39], s24 offen offset:32")
    for it in range(4):
        R=32+12*it
        e(f"v_add_u32 v5, {512*it}, v0")
        e("v_lshlrev_b32 v7, 4, v5"); e("v_lshlrev_b32 v8, 3, v5"); e(f"v_add_u32 v8, {KE}, v8")
        e(f"s_waitcnt vmcnt({12+3*(3-it)})")
        e(f"ds_write_b128 v7, v[{R}:{R+3}]"); e(f"ds_write_b128 v7, v[{R+4}:{R+7}] offset:32768"); e(f"ds_write_b64 v8, v[{R+8}:{R+9}]")
    VW=[]
    for it in range(4):
        R=140+12*it; A=R+9
        VW+=[f"v_add_u32 v{A}, {512*it}, v0", f"v_lshrrev_b32 v{A+1}, 4, v{A}", f"v_mul_u32_u24 v{A+1}, 608, v{A+1}", f"v_bfe_u32 v{A+2}, v{A}, 2, 1", f"v_mul_u32_u24 v{A+2}, 304, v{A+2}", f"v_add_u32 v{A+1}, v{A+1}, v{A+2}",
             f"v_bfe_u32 v{A+2}, v{A}, 3, 1", f"v_and_b32 v{A}, 3, v{A}", f"v_lshl_add_u32 v{A}, v{A+2}, 2, v{A}", f"v_lshl_add_u32 v{A+1}, v{A}, 1, v{A+1}", f"v_add_u32 v{A+1}, {VB}, v{A+1}", f"v_mov_b32 v{A}, 0x3f80"]
        for d in range(18):
            r=R+d//2
            VW.append(f"ds_write_b16 v{A+1}, v{r} offset:{d*16}" if d%2==0 else f"ds_write_b16_d16_hi v{A+1}, v{r} offset:{d*16}")
        VW.append(f"ds_write_b16 v{A+1}, v{A} offset:{18*16}")
    e("s_waitcnt lgkmcnt(0)")
    e("s_lshl_b32 s20, s17, 8"); e("s_lshl_b32 s21, s18, 5"); e("s_add_u32 s20, s20, s21"); e("v_add_u32 v5, s20, v3")
    e("v_mul_u32_u24 v6, 36, v5"); e("v_add_u32 v6, s19, v6"); e("v_lshl_add_u32 v7, v4, 4, v6")
    e("buffer_load_dwordx4 v[40:43], v7, s[36:39], 0 offen")
    e("buffer_load_dword v44, v6, s[36:39], 0 offen offset:32")
    e("v_mov_b32 v45, 0")
    e("v_lshlrev_b32 v10, 4, v3"); e("v_lshl_add_u32 v10, v4, 15, v10")
    e(f"v_lshlrev_b32 v11, 3, v3"); e(f"v_add_u32 v11, {KE}, v11")
    e("v_min_u32 v12, 18, v3"); e("v_lshlrev_b32 v12, 4, v12"); e("v_mul_u32_u24 v13, 304, v4"); e("v_add_u32 v12, v12, v13"); e(f"v_add_u32 v12, {VB}, v12"); e("v_add_u32 v13, 38912, v12")
    e("s_waitcnt vmcnt(0) lgkmcnt(0)")
    e("v_cmp_eq_u32 vcc, 0, v4"); e("s_nop 1"); e("v_cndmask_b32 v44, 0, v44, vcc")
    e("s_barrier")
    if "m5" in ABL:
        srd(48,4,576*576*2); srd(52,6,4608*576*2)
        e("s_lshr_b32 s25, s2, 3"); e("s_lshl_b32 s25, s25, 9"); e("v_add_u32 v15, s25, v0")
        e("v_mul_u32_u24 v16, 7282, v15"); e("v_lshrrev_b32 v16, 16, v16"); e("v_mul_u32_u24 v17, 9, v16"); e("v_sub_u32 v17, v15, v17"); e("v_lshlrev_b32 v17, 7, v17")
        e("s_movk_i32 s25, 9792"); e("v_cmp_gt_u32 vcc, s25, v15"); e("v_mov_b32 v19, 0x100000"); e("v_cndmask_b32 v16, v19, v16, vcc")
        for c in range(2):
            G=30 if "m6" in ABL else 32
            e("s_and_b32 s25, s2, 7"); e(f"s_mul_i32 s25, s25, {G}")
            if c: e(f"s_add_u32 s25, s25, {G-1}"); e("s_min_u32 s25, s25, 239")
            e("s_mul_i32 s26, s25, 1366"); e("s_lshr_b32 s26, s26, 16")
            if c: e("s_cmp_eq_u32 s26, s27"); e("s_cbranch_scc1 at_pfskip")
            else: e("s_mov_b32 s27, s26")
            e("s_lshl_b32 s25, s26, 10"); e("s_min_u32 s26, s26, 1"); e("s_lshl_b32 s26, s26, 6"); e("s_add_u32 s25, s25, s26")
            e("v_add_u32 v18, s25, v16"); e("v_mul_u32_u24 v18, 1152, v18"); e("v_add_u32 v18, v18, v17"); e("v_subrev_u32 v19, 663552, v18")
            e("buffer_load_dword v188, v18, s[48:51], 0 offen"); e("buffer_load_dword v189, v19, s[52:55], 0 offen")
        e("at_pfskip:")
        e("v_cmp_eq_u32 vcc, 0, v4")
    elif "nopf2" not in ABL:
        srd(48,4,576*576*2); srd(52,6,4608*576*2)
        e("s_lshr_b32 s25, s2, 3"); e("s_lshl_b32 s25, s25, 9"); e("v_add_u32 v15, s25, v0")
        e("v_lshrrev_b32 v16, 12, v15"); e("v_and_b32 v15, 4095, v15")
        e("s_and_b32 s25, s2, 7"); e("s_lshl_b32 s25, s25, 1"); e("v_add_u32 v17, s25, v16")
        e("v_cmp_gt_u32 vcc, 2, v16"); e("v_cmp_gt_u32 s[26:27], 15, v17"); e("s_and_b64 vcc, vcc, s[26:27]"); e("s_movk_i32 s25, 3264"); e("v_cmp_gt_u32 s[26:27], s25, v15"); e("s_and_b64 vcc, vcc, s[26:27]")
        e("v_mul_u32_u24 v16, 21846, v17"); e("v_lshrrev_b32 v16, 16, v16"); e("v_mul_u32_u24 v18, 3, v16"); e("v_sub_u32 v17, v17, v18")
        e("v_lshlrev_b32 v18, 10, v16"); e("v_min_u32 v16, 1, v16"); e("v_lshl_add_u32 v18, v16, 6, v18")
        e("v_mul_u32_u24 v16, 21846, v15"); e("v_lshrrev_b32 v16, 16, v16"); e("v_mul_u32_u24 v19, 3, v16"); e("v_sub_u32 v15, v15, v19")
        e("v_add_u32 v18, v18, v16"); e("v_mul_u32_u24 v16, 1152, v18"); e("v_mul_u32_u24 v17, 384, v17"); e("v_lshl_add_u32 v15, v15, 7, v17"); e("v_add_u32 v16, v16, v15")
        e("v_mov_b32 v19, 0x7fffff00"); e("v_cndmask_b32 v16, v19, v16, vcc")
        e("s_movk_i32 s25, 576"); e("v_cmp_gt_u32 vcc, s25, v18"); e("v_cndmask_b32 v15, v19, v16, vcc"); e("v_subrev_u32 v16, 663552, v16"); e("v_cndmask_b32 v16, v16, v19, vcc")
        e("buffer_load_dword v188, v15, s[48:51], 0 offen"); e("buffer_load_dword v189, v16, s[52:55], 0 offen")
        if "pf3" in ABL:
            e("s_lshr_b32 s25, s2, 3"); e("s_lshl_b32 s25, s25, 9"); e("v_add_u32 v15, s25, v0")
            e("v_lshrrev_b32 v16, 13, v15"); e("v_and_b32 v15, 8191, v15")
            e("s_and_b32 s25, s2, 7"); e("s_lshl_b32 s25, s25, 1"); e("v_add_u32 v17, s25, v16")
            e("v_mul_u32_u24 v16, 21846, v17"); e("v_lshrrev_b32 v16, 16, v16")
            e("v_cmp_gt_u32 vcc, 15, v17"); e("v_cmp_lt_u32 s[26:27], 0, v16"); e("s_and_b64 vcc, vcc, s[26:27]")
            e("v_lshlrev_b32 v18, 11, v16"); e("v_add_u32 v18, 128, v18")
            e("v_lshrrev_b32 v16, 2, v15"); e("v_and_b32 v15, 3, v15"); e("v_lshl_add_u32 v18, v15, 7, v18"); e(f"s_movk_i32 s25, {LDA}"); e("v_mul_lo_u32 v16, v16, s25"); e("v_add_u32 v16, v16, v18")
            e("v_cndmask_b32 v16, v19, v16, vcc"); e("buffer_load_dword v190, v16, s[44:47], 0 offen")
        e("v_cmp_eq_u32 vcc, 0, v4")
    S=[64,80]; KF=[48,56]; PF=96; VF=[104,112]; O=120; MX=14
    def rdk(t,b):
        e(f"ds_read_b128 v[{KF[b]}:{KF[b]+3}], v10 offset:{t*512}"); e(f"ds_read_b64 v[{KF[b]+4}:{KF[b]+5}], v11 offset:{t*256}")
    def qk(b):
        e(f"v_mfma_f32_32x32x16_bf16 v[{S[b]}:{S[b]+15}], v[{KF[b]}:{KF[b]+3}], v[40:43], 0")
        e(f"v_mfma_f32_32x32x8_bf16 v[{S[b]}:{S[b]+15}], v[{KF[b]+4}:{KF[b]+5}], v[44:45], v[{S[b]}:{S[b]+15}]")
    def mx(b):
        for i in range(8): e(f"v_max3_f32 v{MX}, v{MX}, v{S[b]+2*i}, v{S[b]+2*i+1}")
    stamp(1); stamp(5,wv=4)
    e(f"v_mov_b32 v{MX}, 0xff800000")
    rdk(0,0)
    for t in range(64):
        b=t&1
        if t==32: assert not VW; e("s_waitcnt lgkmcnt(0)"); e("s_barrier")
        if t<63: rdk(t+1,b^1); e("s_waitcnt lgkmcnt(2)")
        else: e("s_waitcnt lgkmcnt(0)")
        e(f"v_mfma_f32_32x32x16_bf16 v[{S[b]}:{S[b]+15}], v[{KF[b]}:{KF[b]+3}], v[40:43], 0")
        if t>0:
            for i in range(4): e(f"v_max3_f32 v{MX}, v{MX}, v{S[b^1]+2*i}, v{S[b^1]+2*i+1}")
        for _ in range(3):
            if VW: e(VW.pop(0))
        e(f"v_mfma_f32_32x32x8_bf16 v[{S[b]}:{S[b]+15}], v[{KF[b]+4}:{KF[b]+5}], v[44:45], v[{S[b]}:{S[b]+15}]")
        if t>0:
            for i in range(4,8): e(f"v_max3_f32 v{MX}, v{MX}, v{S[b^1]+2*i}, v{S[b^1]+2*i+1}")
        for _ in range(3):
            if VW: e(VW.pop(0))
    e("s_nop 15"); mx(1)
    e(f"v_mov_b32 v15, v{MX}"); e("s_nop 1"); e(f"v_permlane32_swap_b32 v{MX}, v15"); e("s_nop 1"); e(f"v_max_f32 v{MX}, v{MX}, v15")
    e(f"v_sub_f32 v15, 0, v{MX}"); e("v_cvt_pk_bf16_f32 v16, v15, v15"); e("v_lshlrev_b32 v17, 16, v16"); e("v_sub_f32 v17, v15, v17"); e("v_cvt_pk_bf16_f32 v17, v17, v17")
    e("v_and_b32 v16, 0xffff, v16"); e("v_lshl_or_b32 v16, v17, 16, v16"); e("v_cndmask_b32 v45, 0, v16, vcc")
    for i in range(16): e(f"v_mov_b32 v{O+i}, 0")
    stamp(2); stamp(6,wv=4)
    def rdv(t,b):
        for g in range(2):
            G=2*t+g; r,o=(12,G*608) if G<64 else (13,(G-64)*608)
            e(f"ds_read_b128 v[{VF[b]+4*g}:{VF[b]+4*g+3}], v{r} offset:{o}")
    def sm(b):
        for i in range(16): e(f"v_exp_f32 v{S[b]+i}, v{S[b]+i}")
        for i in range(8): e(f"v_cvt_pk_bf16_f32 v{PF+i}, v{S[b]+2*i}, v{S[b]+2*i+1}")
    def pv(b):
        for g in range(2): e(f"v_mfma_f32_32x32x16_bf16 v[{O}:{O+15}], v[{VF[b]+4*g}:{VF[b]+4*g+3}], v[{PF+4*g}:{PF+4*g+3}], v[{O}:{O+15}]")
    PFB=[PF,140]
    rdk(0,0); rdk(1,1); e("s_waitcnt lgkmcnt(2)"); qk(0)
    for t in range(65):
        b=t&1
        e("s_waitcnt lgkmcnt(0)")
        M=[]
        if t<63:
            M.append(f"v_mfma_f32_32x32x16_bf16 v[{S[b^1]}:{S[b^1]+15}], v[{KF[b^1]}:{KF[b^1]+3}], v[40:43], 0")
            M.append(f"v_mfma_f32_32x32x8_bf16 v[{S[b^1]}:{S[b^1]+15}], v[{KF[b^1]+4}:{KF[b^1]+5}], v[44:45], v[{S[b^1]}:{S[b^1]+15}]")
        if t>0:
            for g_ in range(2): M.append(f"v_mfma_f32_32x32x16_bf16 v[{O}:{O+15}], v[{VF[b^1]+4*g_}:{VF[b^1]+4*g_+3}], v[{PFB[b^1]+4*g_}:{PFB[b^1]+4*g_+3}], v[{O}:{O+15}]")
        if t==0: e("s_nop 7")
        if t<64:
            for i in range(16):
                if i%4==0 and M: e(M.pop(0))
                if i==6 and t+2<64: rdk(t+2,b)
                if i==10: rdv(t,b)
                e(f"v_exp_f32 v{S[b]+i}, v{S[b]+i}")
            for i in range(8): e(f"v_cvt_pk_bf16_f32 v{PFB[b]+i}, v{S[b]+2*i}, v{S[b]+2*i+1}")
        for z in M: e(z)
    e("s_nop 15")
    e(f"v_mov_b32 v15, v{O+10}"); e(f"v_mov_b32 v16, v{O+10}"); e("s_nop 1"); e("v_permlane32_swap_b32 v15, v16"); e("s_nop 1")
    e("v_rcp_f32 v15, v15"); e("s_nop 0")
    for i in range(10): e(f"v_mul_f32 v{O+i}, v{O+i}, v15")
    for i in range(5): e(f"v_cvt_pk_bf16_f32 v{O+i}, v{O+2*i}, v{O+2*i+1}")
    e(f"s_movk_i32 s42, {LDA}"); e("v_mul_lo_u32 v6, v5, s42"); e("v_add_u32 v6, s22, v6"); e("v_lshl_add_u32 v7, v4, 3, v6")
    e("v_lshl_add_u32 v8, v4, 30, v6")
    e(f"buffer_store_dwordx2 v[{O}:{O+1}], v7, s[44:47], 0 offen"); e(f"buffer_store_dwordx2 v[{O+2}:{O+3}], v7, s[44:47], 0 offen offset:16")
    e(f"buffer_store_dword v{O+4}, v8, s[44:47], 0 offen offset:32")
    stamp(3); stamp(7,wv=4)
    e("at_end:"); e("s_endpgm")
    e(kdesc("at_kernel",256 if "stamp" in ABL else 192))
```

```python
from gen import *
def k3():
    khead("g2_kernel")
    e("s_cmp_ge_u32 s2, 256"); e("s_cbranch_scc1 g2_end")
    e("s_load_dwordx2 s[4:5], s[0:1], 16"); e("s_load_dwordx2 s[6:7], s[0:1], 48"); e("s_load_dwordx2 s[12:13], s[0:1], 72")
    if "m5" in ABL:
        e("s_and_b32 s14, s2, 7"); e("s_lshr_b32 s15, s2, 3"); e("s_lshl_b32 s14, s14, 5"); e("s_add_u32 s15, s14, s15")
        e("s_cmp_ge_u32 s15, 240"); e("s_cbranch_scc1 g2_end")
        e("s_mul_i32 s14, s15, 1366"); e("s_lshr_b32 s14, s14, 16"); e("s_mul_i32 s17, s14, 48"); e("s_sub_u32 s15, s15, s17")
        e("s_mul_i32 s16, s15, 21846"); e("s_lshr_b32 s16, s16, 16"); e("s_mul_i32 s17, s16, 3"); e("s_sub_u32 s17, s15, s17")
    else:
        e("s_and_b32 s14, s2, 7"); e("s_lshr_b32 s15, s2, 3"); e("s_and_b32 s16, s15, 15"); e("s_lshr_b32 s15, s15, 4"); e("s_lshl_b32 s14, s14, 1"); e("s_add_u32 s15, s14, s15")
        e("s_cmp_ge_u32 s15, 15"); e("s_cbranch_scc1 g2_end")
        e("s_mul_i32 s14, s15, 21846"); e("s_lshr_b32 s14, s14, 16"); e("s_mul_i32 s17, s14, 3"); e("s_sub_u32 s17, s15, s17")
    e("v_lshrrev_b32 v1, 6, v0"); e("s_nop 0"); e("v_readfirstlane_b32 s18, v1")
    e("v_and_b32 v2, 63, v0"); e("v_and_b32 v3, 31, v2"); e("v_lshrrev_b32 v4, 5, v2")
    e("s_waitcnt lgkmcnt(0)")
    srd(20,4,576*576*2); srd(24,6,4608*576*2)
    wgstamp(0,kb=3)
    e("s_add_u32 s40, s12, %d"%WS_AH); e("s_addc_u32 s41, s13, 0"); srd(44,40,2048*LDA)
    e("s_add_u32 s40, s12, %d"%WS_P); e("s_addc_u32 s41, s13, 0"); srd(36,40,5*2048*576*4)
    e("s_lshl_b32 s50, s14, 4"); e("s_min_u32 s51, s14, 1"); e("s_add_u32 s50, s50, s51"); e("s_lshl_b32 s51, s14, 4"); e("s_add_u32 s51, s51, 17")
    e("s_and_b32 s71, s18, 3"); e("s_lshr_b32 s72, s18, 2")
    e("s_lshl_b32 s19, s16, 7"); e("s_lshl_b32 s40, s71, 5"); e("s_add_u32 s40, s19, s40"); e("v_add_u32 v5, s40, v3")
    e(f"s_movk_i32 s42, {LDA}")
    e("s_mul_i32 s40, s18, 12"); e("s_mul_i32 s41, s17, 384")
    e("v_bfe_u32 v7, v2, 2, 2"); e("v_and_b32 v8, 3, v2"); e("v_lshlrev_b32 v8, 4, v8"); e("v_add_u32 v8, s41, v8")
    for t in range(3):
        e("v_lshrrev_b32 v9, 4, v2"); e(f"v_add_u32 v9, {4*t}, v9"); e("v_add_u32 v9, s40, v9")
        e("v_mul_u32_u24 v16, 43, v9"); e("v_lshrrev_b32 v16, 8, v16"); e("v_mul_u32_u24 v17, 6, v16"); e("v_sub_u32 v17, v9, v17")
        e("v_lshl_add_u32 v16, v16, 2, v7"); e("v_mul_u32_u24 v16, 1152, v16"); e(f"v_lshl_add_u32 v16, v17, 6, v16"); e(f"v_add_u32 v{10+t}, v16, v8")
    e("v_mul_u32_u24 v16, 3072, v4"); e("v_lshl_add_u32 v16, v7, 6, v16"); e("v_bfe_u32 v17, v2, 4, 1"); e("v_lshl_add_u32 v16, v17, 5, v16"); e("v_and_b32 v17, 3, v2"); e("v_lshl_add_u32 v16, v17, 3, v16")
    e("s_mul_i32 s40, s72, 768"); e("v_add_u32 v16, s40, v16")
    e("s_mul_i32 s52, s18, 3072")
    ACC=20; SL=40960; RS=[68,132]; AA=196
    for i in range(48): e(f"v_mov_b32 v{ACC+i}, 0")
    e("s_sub_u32 s69, s51, 1")
    e("s_lshl_b32 s40, s18, 4"); e("s_add_u32 s40, s19, s40")
    e("v_lshrrev_b32 v7, 3, v2"); e("v_add_u32 v9, s40, v7"); e("v_mul_lo_u32 v6, v9, s42"); e("v_and_b32 v9, 7, v2"); e("v_xor_b32 v9, v9, v7"); e("v_lshl_add_u32 v6, v9, 4, v6")
    e("s_lshl_b32 s70, s18, 11"); e("s_add_u32 s70, s70, 24576")
    e("s_lshl_b32 s73, s71, 12"); e("s_add_u32 s73, s73, 24576")
    e("v_and_b32 v9, 7, v3"); e("v_lshlrev_b32 v7, 7, v3"); e("v_add_u32 v7, s73, v7")
    for st in range(4):
        e(f"v_add_u32 v8, {2*st}, v4"); e("v_xor_b32 v8, v8, v9"); e(f"v_lshl_add_u32 v{AA+st}, v8, 4, v7")
    for sl in range(4):
        for st in range(4): e(f"v_add_u32 v{200+4*sl+st}, {sl*SL}, v{AA+st}")
        e(f"v_add_u32 v{216+sl}, {sl*SL}, v16")
    def stage_setup(creg):
        e(f"s_min_u32 s62, s{creg}, s69")
        e(f"s_cmp_lt_u32 s62, 9"); e("s_cselect_b32 s56, s20, s24"); e("s_cselect_b32 s57, s21, s25"); e("s_cselect_b32 s58, s22, s26"); e("s_mov_b32 s59, s23")
        e(f"s_cselect_b32 s60, 0, 9"); e(f"s_sub_u32 s60, s62, s60"); e("s_mul_i32 s60, s60, 73728"); e(f"s_lshl_b32 s63, s62, 7"); e(f"s_add_u32 s61, s63, {8*LDA}")
    def stage_list(buf):
        L=[]
        for t in range(3): L.append([f"s_add_u32 m0, s52, {buf*SL+t*1024}","s_nop 0",f"buffer_load_dwordx4 v{10+t}, s[56:59], s60 offen lds"])
        for t in range(2): L.append([f"s_add_u32 m0, s70, {buf*SL+t*1024}","s_nop 0",f"buffer_load_dwordx4 v6, s[44:47], s{63 if t==0 else 61} offen lds"])
        return L
    def reads(buf,rs):
        R=RS[rs]; L=[]
        for s_ in range(4):
            L.append(f"ds_read_b128 v[{R+4*s_}:{R+4*s_+3}], v{200+4*buf+s_}")
            p=R+16+s_*12
            for nb in range(3):
                for q in range(2): L.append(f"ds_read_b64_tr_b16 v[{p+nb*4+q*2}:{p+nb*4+q*2+1}], v{216+buf} offset:{((4*s_+q)*6+nb)*256}")
        return L
    def compute(rs,rd,dma):
        R=RS[rs]; k=0
        for s_ in range(4):
            p=R+16+s_*12
            for nb in range(3):
                e(f"v_mfma_f32_32x32x16_bf16 v[{ACC+16*nb}:{ACC+16*nb+15}], v[{p+nb*4}:{p+nb*4+3}], v[{R+4*s_}:{R+4*s_+3}], v[{ACC+16*nb}:{ACC+16*nb+15}]")
                if dma and k%2==0:
                    for z in dma.pop(0): e(z)
                for _ in range(3):
                    if rd: e(rd.pop(0))
                k+=1
    e("s_mov_b32 s53, s50")
    for i in range(4):
        e(f"s_add_u32 s54, s53, {i}"); stage_setup(54)
        for l in stage_list(i):
            for z in l: e(z)
    e("s_waitcnt vmcnt(15)"); e("s_barrier")
    for z in reads(0,0): e(z)
    e("g2_loop:")
    for buf in range(4):
        e("s_add_u32 s54, s53, 4"); stage_setup(54)
        e("s_waitcnt vmcnt(10) lgkmcnt(0)"); e("s_barrier")
        compute(buf&1,reads((buf+1)&3,(buf+1)&1),stage_list(buf))
        e("s_add_u32 s53, s53, 1"); e("s_cmp_lt_u32 s53, s51"); e("s_cbranch_scc0 g2_fin")
    e("s_branch g2_loop")
    e("g2_fin:"); e("s_nop 15")
    e("s_waitcnt vmcnt(0) lgkmcnt(0)"); e("s_barrier")
    e("s_lshl_b32 s40, s71, 5"); e("v_add_u32 v6, s40, v3"); e("v_mul_u32_u24 v6, 400, v6"); e("v_lshl_add_u32 v6, v4, 3, v6"); e("s_mul_i32 s55, s72, 192"); e("v_add_u32 v6, s55, v6")
    for nb in range(3):
        for q in range(4):
            r=ACC+16*nb+4*q
            e(f"v_cvt_pk_bf16_f32 v{r}, v{r}, v{r+1}"); e(f"v_cvt_pk_bf16_f32 v{r+1}, v{r+2}, v{r+3}")
            e(f"ds_write_b64 v6, v[{r}:{r+1}] offset:{nb*64+q*16}")
    e("s_mul_i32 s54, s14, 2359296"); e("s_mul_i32 s55, s17, 384"); e("s_add_u32 s54, s54, s55"); e("s_mul_i32 s55, s19, 1152"); e("s_add_u32 s54, s54, s55")
    for k in range(6):
        e(f"v_add_u32 v8, {512*k}, v0"); e("v_mul_u32_u24 v9, 2731, v8"); e("v_lshrrev_b32 v9, 16, v9"); e("v_mul_u32_u24 v10, 24, v9"); e("v_sub_u32 v10, v8, v10"); e("v_lshlrev_b32 v10, 4, v10")
        e(f"v_mul_u32_u24 v{70+k}, 400, v9"); e(f"v_add_u32 v{70+k}, v{70+k}, v10"); e(f"v_mul_u32_u24 v{80+k}, 1152, v9"); e(f"v_add_u32 v{80+k}, v{80+k}, v10")
    e("s_waitcnt lgkmcnt(0)"); e("s_barrier")
    for k in range(6): e(f"ds_read_b128 v[{100+4*k}:{103+4*k}], v{70+k}")
    for k in range(6):
        e(f"s_waitcnt lgkmcnt({5-k})"); e(f"buffer_store_dwordx4 v[{100+4*k}:{103+4*k}], v{80+k}, s[36:39], s54 offen")
    e("s_waitcnt vmcnt(0)"); wgstamp(1,kb=3); wgstamp(2,kb=3,wv=4); wgstamp(3,kb=3,wv=7)
    e("g2_end:"); e("s_endpgm")
    e(kdesc("g2_kernel",224))
def k4():
    khead("rd_kernel")
    e("s_cmp_ge_u32 s2, 1152"); e("s_cbranch_scc1 rd_end")
    e("s_load_dwordx2 s[4:5], s[0:1], 0"); e("s_load_dwordx2 s[6:7], s[0:1], 56"); e("s_load_dwordx2 s[12:13], s[0:1], 72")
    e("v_lshrrev_b32 v2, 6, v0"); e("s_nop 0"); e("v_readfirstlane_b32 s18, v2"); wgstamp(0,kb=4)
    e("s_lshl_b32 s3, s2, 8"); e("v_add_u32 v1, s3, v0"); e("v_lshlrev_b32 v2, 4, v1"); e("v_lshlrev_b32 v3, 3, v1")
    e("s_waitcnt lgkmcnt(0)")
    srd(20,4,2048*576*2); srd(24,6,2048*576*2)
    e("s_add_u32 s40, s12, %d"%WS_P); e("s_addc_u32 s41, s13, 0"); srd(36,40,5*2048*576*4)
    e("buffer_load_dwordx2 v[4:5], v3, s[20:23], 0 offen")
    for p in range(5):
        e(f"s_mov_b32 s40, {p*2359296}"); e(f"buffer_load_dwordx2 v[{8+2*p}:{9+2*p}], v3, s[36:39], s40 offen")
    e("s_waitcnt vmcnt(0)")
    e("v_lshlrev_b32 v28, 16, v4"); e("v_and_b32 v29, 0xffff0000, v4"); e("v_lshlrev_b32 v30, 16, v5"); e("v_and_b32 v31, 0xffff0000, v5")
    for p in range(5):
        for j in range(2):
            e(f"v_lshlrev_b32 v20, 16, v{8+2*p+j}"); e(f"v_and_b32 v21, 0xffff0000, v{8+2*p+j}"); e(f"v_add_f32 v{28+2*j}, v{28+2*j}, v20"); e(f"v_add_f32 v{29+2*j}, v{29+2*j}, v21")
    e("v_cvt_pk_bf16_f32 v4, v28, v29"); e("v_cvt_pk_bf16_f32 v5, v30, v31")
    e("buffer_store_dwordx2 v[4:5], v3, s[24:27], 0 offen")
    wgstamp(1,kb=4)
    e("rd_end:"); e("s_endpgm")
    e(kdesc("rd_kernel",32))
```

```python
from gen import *
def k3():
    khead("g2_kernel")
    e("s_cmp_ge_u32 s2, 256"); e("s_cbranch_scc1 g2_end")
    e("s_load_dwordx2 s[4:5], s[0:1], 16"); e("s_load_dwordx2 s[6:7], s[0:1], 48"); e("s_load_dwordx2 s[12:13], s[0:1], 72")
    if "m5" in ABL:
        if "m6" in ABL:
            e("s_and_b32 s14, s2, 7"); e("s_lshr_b32 s15, s2, 3"); e("s_cmp_ge_u32 s15, 30"); e("s_cbranch_scc1 g2_end"); e("s_mul_i32 s14, s14, 30"); e("s_add_u32 s15, s14, s15")
        else:
            e("s_and_b32 s14, s2, 7"); e("s_lshr_b32 s15, s2, 3"); e("s_lshl_b32 s14, s14, 5"); e("s_add_u32 s15, s14, s15")
        e("s_cmp_ge_u32 s15, 240"); e("s_cbranch_scc1 g2_end")
        e("s_mul_i32 s14, s15, 1366"); e("s_lshr_b32 s14, s14, 16"); e("s_mul_i32 s17, s14, 48"); e("s_sub_u32 s15, s15, s17")
        e("s_mul_i32 s16, s15, 21846"); e("s_lshr_b32 s16, s16, 16"); e("s_mul_i32 s17, s16, 3"); e("s_sub_u32 s17, s15, s17")
    else:
        e("s_and_b32 s14, s2, 7"); e("s_lshr_b32 s15, s2, 3"); e("s_and_b32 s16, s15, 15"); e("s_lshr_b32 s15, s15, 4"); e("s_lshl_b32 s14, s14, 1"); e("s_add_u32 s15, s14, s15")
        e("s_cmp_ge_u32 s15, 15"); e("s_cbranch_scc1 g2_end")
        e("s_mul_i32 s14, s15, 21846"); e("s_lshr_b32 s14, s14, 16"); e("s_mul_i32 s17, s14, 3"); e("s_sub_u32 s17, s15, s17")
    e("v_lshrrev_b32 v1, 6, v0"); e("s_nop 0"); e("v_readfirstlane_b32 s18, v1")
    e("v_and_b32 v2, 63, v0"); e("v_and_b32 v3, 31, v2"); e("v_lshrrev_b32 v4, 5, v2")
    e("s_waitcnt lgkmcnt(0)")
    srd(20,4,576*576*2); srd(24,6,4608*576*2)
    wgstamp(0,kb=3)
    e("s_add_u32 s40, s12, %d"%WS_AH); e("s_addc_u32 s41, s13, 0"); srd(44,40,2048*LDA)
    e("s_add_u32 s40, s12, %d"%WS_P); e("s_addc_u32 s41, s13, 0"); srd(36,40,5*2048*576*4)
    e("s_lshl_b32 s50, s14, 4"); e("s_min_u32 s51, s14, 1"); e("s_add_u32 s50, s50, s51"); e("s_lshl_b32 s51, s14, 4"); e("s_add_u32 s51, s51, 17")
    e("s_and_b32 s71, s18, 3"); e("s_lshr_b32 s72, s18, 2")
    e("s_lshl_b32 s19, s16, 7"); e("s_lshl_b32 s40, s71, 5"); e("s_add_u32 s40, s19, s40"); e("v_add_u32 v5, s40, v3")
    e(f"s_movk_i32 s42, {LDA}")
    e("s_mul_i32 s40, s18, 12"); e("s_mul_i32 s41, s17, 384")
    e("v_bfe_u32 v7, v2, 2, 2"); e("v_and_b32 v8, 3, v2"); e("v_lshlrev_b32 v8, 4, v8"); e("v_add_u32 v8, s41, v8")
    for t in range(3):
        e("v_lshrrev_b32 v9, 4, v2"); e(f"v_add_u32 v9, {4*t}, v9"); e("v_add_u32 v9, s40, v9")
        e("v_mul_u32_u24 v16, 43, v9"); e("v_lshrrev_b32 v16, 8, v16"); e("v_mul_u32_u24 v17, 6, v16"); e("v_sub_u32 v17, v9, v17")
        e("v_lshl_add_u32 v16, v16, 2, v7"); e("v_mul_u32_u24 v16, 1152, v16"); e(f"v_lshl_add_u32 v16, v17, 6, v16"); e(f"v_add_u32 v{10+t}, v16, v8")
    e("v_mul_u32_u24 v16, 3072, v4"); e("v_lshl_add_u32 v16, v7, 6, v16"); e("v_bfe_u32 v17, v2, 4, 1"); e("v_lshl_add_u32 v16, v17, 5, v16"); e("v_and_b32 v17, 3, v2"); e("v_lshl_add_u32 v16, v17, 3, v16")
    e("s_mul_i32 s40, s72, 768"); e("v_add_u32 v16, s40, v16")
    e("s_mul_i32 s52, s18, 3072")
    ACC=20; SL=40960; RS=[68,132]; AA=196
    for i in range(48): e(f"v_mov_b32 v{ACC+i}, 0")
    e("s_sub_u32 s69, s51, 1")
    e("s_lshl_b32 s40, s18, 4"); e("s_add_u32 s40, s19, s40")
    e("v_lshrrev_b32 v7, 3, v2"); e("v_add_u32 v9, s40, v7"); e("v_mul_lo_u32 v6, v9, s42"); e("v_and_b32 v9, 7, v2"); e("v_xor_b32 v9, v9, v7"); e("v_lshl_add_u32 v6, v9, 4, v6")
    e("s_lshl_b32 s70, s18, 11"); e("s_add_u32 s70, s70, 24576")
    e("s_lshl_b32 s73, s71, 12"); e("s_add_u32 s73, s73, 24576")
    e("v_and_b32 v9, 7, v3"); e("v_lshlrev_b32 v7, 7, v3"); e("v_add_u32 v7, s73, v7")
    for st in range(4):
        e(f"v_add_u32 v8, {2*st}, v4"); e("v_xor_b32 v8, v8, v9"); e(f"v_lshl_add_u32 v{AA+st}, v8, 4, v7")
    for sl in range(4):
        for st in range(4): e(f"v_add_u32 v{200+4*sl+st}, {sl*SL}, v{AA+st}")
        e(f"v_add_u32 v{216+sl}, {sl*SL}, v16")
    def stage_setup(creg):
        e(f"s_min_u32 s62, s{creg}, s69")
        e(f"s_cmp_lt_u32 s62, 9"); e("s_cselect_b32 s56, s20, s24"); e("s_cselect_b32 s57, s21, s25"); e("s_cselect_b32 s58, s22, s26"); e("s_mov_b32 s59, s23")
        e(f"s_cselect_b32 s60, 0, 9"); e(f"s_sub_u32 s60, s62, s60"); e("s_mul_i32 s60, s60, 73728"); e(f"s_lshl_b32 s63, s62, 7"); e(f"s_add_u32 s61, s63, {8*LDA}")
        if "tz" in ABL: e(f"s_cmp_gt_u32 s{creg}, s69"); e("s_cselect_b32 s58, 0, s58"); e("s_cselect_b32 s46, 0, s46")
    def stage_list(buf):
        L=[]
        for t in range(3): L.append([f"s_add_u32 m0, s52, {buf*SL+t*1024}","s_nop 0",f"buffer_load_dwordx4 v{10+t}, s[56:59], s60 offen lds"])
        for t in range(2): L.append([f"s_add_u32 m0, s70, {buf*SL+t*1024}","s_nop 0",f"buffer_load_dwordx4 v6, s[44:47], s{63 if t==0 else 61} offen lds"])
        return L
    def reads(buf,rs):
        R=RS[rs]; L=[]
        for s_ in range(4):
            L.append(f"ds_read_b128 v[{R+4*s_}:{R+4*s_+3}], v{200+4*buf+s_}")
            p=R+16+s_*12
            for nb in range(3):
                for q in range(2): L.append(f"ds_read_b64_tr_b16 v[{p+nb*4+q*2}:{p+nb*4+q*2+1}], v{216+buf} offset:{((4*s_+q)*6+nb)*256}")
        return L
    def compute(rs,rd,dma):
        R=RS[rs]; k=0
        for s_ in range(4):
            p=R+16+s_*12
            for nb in range(3):
                e(f"v_mfma_f32_32x32x16_bf16 v[{ACC+16*nb}:{ACC+16*nb+15}], v[{p+nb*4}:{p+nb*4+3}], v[{R+4*s_}:{R+4*s_+3}], v[{ACC+16*nb}:{ACC+16*nb+15}]")
                if dma and k%2==0:
                    for z in dma.pop(0): e(z)
                for _ in range(3):
                    if rd: e(rd.pop(0))
                k+=1
    e("s_mov_b32 s53, s50")
    for i in range(4):
        e(f"s_add_u32 s54, s53, {i}"); stage_setup(54)
        for l in stage_list(i):
            for z in l: e(z)
    e("s_waitcnt vmcnt(15)"); e("s_barrier")
    for z in reads(0,0): e(z)
    e("g2_loop:")
    for buf in range(4):
        e("s_add_u32 s54, s53, 4"); stage_setup(54)
        e("s_waitcnt vmcnt(10) lgkmcnt(0)"); e("s_barrier")
        compute(buf&1,reads((buf+1)&3,(buf+1)&1),stage_list(buf))
        e("s_add_u32 s53, s53, 1"); e("s_cmp_lt_u32 s53, s51"); e("s_cbranch_scc0 g2_fin")
    e("s_branch g2_loop")
    e("g2_fin:"); e("s_nop 15")
    e("s_waitcnt vmcnt(0) lgkmcnt(0)"); e("s_barrier")
    e("s_lshl_b32 s40, s71, 5"); e("v_add_u32 v6, s40, v3"); e("v_mul_u32_u24 v6, 400, v6"); e("v_lshl_add_u32 v6, v4, 3, v6"); e("s_mul_i32 s55, s72, 192"); e("v_add_u32 v6, s55, v6")
    for nb in range(3):
        for q in range(4):
            r=ACC+16*nb+4*q
            e(f"v_cvt_pk_bf16_f32 v{r}, v{r}, v{r+1}"); e(f"v_cvt_pk_bf16_f32 v{r+1}, v{r+2}, v{r+3}")
            e(f"ds_write_b64 v6, v[{r}:{r+1}] offset:{nb*64+q*16}")
    e("s_mul_i32 s54, s14, 2359296"); e("s_mul_i32 s55, s17, 384"); e("s_add_u32 s54, s54, s55"); e("s_mul_i32 s55, s19, 1152"); e("s_add_u32 s54, s54, s55")
    for k in range(6):
        e(f"v_add_u32 v8, {512*k}, v0"); e("v_mul_u32_u24 v9, 2731, v8"); e("v_lshrrev_b32 v9, 16, v9"); e("v_mul_u32_u24 v10, 24, v9"); e("v_sub_u32 v10, v8, v10"); e("v_lshlrev_b32 v10, 4, v10")
        e(f"v_mul_u32_u24 v{70+k}, 400, v9"); e(f"v_add_u32 v{70+k}, v{70+k}, v10"); e(f"v_mul_u32_u24 v{80+k}, 1152, v9"); e(f"v_add_u32 v{80+k}, v{80+k}, v10")
    e("s_waitcnt lgkmcnt(0)"); e("s_barrier")
    for k in range(6): e(f"ds_read_b128 v[{100+4*k}:{103+4*k}], v{70+k}")
    for k in range(6):
        e(f"s_waitcnt lgkmcnt({5-k})"); e(f"buffer_store_dwordx4 v[{100+4*k}:{103+4*k}], v{80+k}, s[36:39], s54 offen")
    e("s_waitcnt vmcnt(0)"); wgstamp(1,kb=3); wgstamp(2,kb=3,wv=4); wgstamp(3,kb=3,wv=7)
    e("g2_end:"); e("s_endpgm")
    e(kdesc("g2_kernel",224))
def k4():
    khead("rd_kernel")
    e("s_cmp_ge_u32 s2, 1152"); e("s_cbranch_scc1 rd_end")
    e("s_load_dwordx2 s[4:5], s[0:1], 0"); e("s_load_dwordx2 s[6:7], s[0:1], 56"); e("s_load_dwordx2 s[12:13], s[0:1], 72")
    e("v_lshrrev_b32 v2, 6, v0"); e("s_nop 0"); e("v_readfirstlane_b32 s18, v2"); wgstamp(0,kb=4)
    e("s_lshl_b32 s3, s2, 8"); e("v_add_u32 v1, s3, v0"); e("v_lshlrev_b32 v2, 4, v1"); e("v_lshlrev_b32 v3, 3, v1")
    e("s_waitcnt lgkmcnt(0)")
    srd(20,4,2048*576*2); srd(24,6,2048*576*2)
    e("s_add_u32 s40, s12, %d"%WS_P); e("s_addc_u32 s41, s13, 0"); srd(36,40,5*2048*576*4)
    e("buffer_load_dwordx2 v[4:5], v3, s[20:23], 0 offen")
    for p in range(5):
        e(f"s_mov_b32 s40, {p*2359296}"); e(f"buffer_load_dwordx2 v[{8+2*p}:{9+2*p}], v3, s[36:39], s40 offen")
    e("s_waitcnt vmcnt(0)")
    e("v_lshlrev_b32 v28, 16, v4"); e("v_and_b32 v29, 0xffff0000, v4"); e("v_lshlrev_b32 v30, 16, v5"); e("v_and_b32 v31, 0xffff0000, v5")
    for p in range(5):
        for j in range(2):
            e(f"v_lshlrev_b32 v20, 16, v{8+2*p+j}"); e(f"v_and_b32 v21, 0xffff0000, v{8+2*p+j}"); e(f"v_add_f32 v{28+2*j}, v{28+2*j}, v20"); e(f"v_add_f32 v{29+2*j}, v{29+2*j}, v21")
    e("v_cvt_pk_bf16_f32 v4, v28, v29"); e("v_cvt_pk_bf16_f32 v5, v30, v31")
    e("buffer_store_dwordx2 v[4:5], v3, s[24:27], 0 offen")
    wgstamp(1,kb=4)
    e("rd_end:"); e("s_endpgm")
    e(kdesc("rd_kernel",32))
```

```python
from gen import *
def k2():
    khead("at_kernel")
    e("s_cmp_ge_u32 s2, 256"); e("s_cbranch_scc1 at_end")
    e("s_load_dwordx2 s[12:13], s[0:1], 72"); e("s_load_dwordx2 s[4:5], s[0:1], 16"); e("s_load_dwordx2 s[6:7], s[0:1], 48")
    e("s_and_b32 s16, s2, 31"); e("s_lshr_b32 s17, s2, 5")
    e("v_lshrrev_b32 v1, 6, v0"); e("s_nop 0"); e("v_readfirstlane_b32 s18, v1")
    e("v_and_b32 v2, 63, v0"); e("v_and_b32 v3, 31, v2"); e("v_lshrrev_b32 v4, 5, v2")
    e("s_waitcnt lgkmcnt(0)")
    e("s_add_u32 s40, s12, %d"%WS_QKV); e("s_addc_u32 s41, s13, 0"); srd(36,40,2048*LDQ)
    e("s_add_u32 s40, s12, %d"%WS_AH); e("s_addc_u32 s41, s13, 0"); srd(44,40,2048*LDA)
    e("s_mul_i32 s19, s16, 73728"); e("s_mul_i32 s22, s16, 36")
    KE=65536; VB=81920
    stamp(0); stamp(4,wv=4)
    e("s_mov_b32 s23, 2359296"); e("s_mov_b32 s24, 4718592")
    for it in range(4):
        R=32+12*it
        e(f"v_add_u32 v5, {512*it}, v0")
        e(f"v_mul_u32_u24 v6, 36, v5"); e("v_add_u32 v6, s19, v6")
        e(f"buffer_load_dwordx4 v[{R}:{R+3}], v6, s[36:39], s23 offen")
        e(f"buffer_load_dwordx4 v[{R+4}:{R+7}], v6, s[36:39], s23 offen offset:16")
        e(f"buffer_load_dword v{R+8}, v6, s[36:39], s23 offen offset:32")
        e(f"v_mov_b32 v{R+9}, 0x3f803f80")
    for it in range(4):
        R=140+12*it
        e(f"v_add_u32 v5, {512*it}, v0")
        e(f"v_mul_u32_u24 v6, 36, v5"); e("v_add_u32 v6, s19, v6")
        e(f"buffer_load_dwordx4 v[{R}:{R+3}], v6, s[36:39], s24 offen")
        e(f"buffer_load_dwordx4 v[{R+4}:{R+7}], v6, s[36:39], s24 offen offset:16")
        e(f"buffer_load_dword v{R+8}, v6, s[36:39], s24 offen offset:32")
    for it in range(4):
        R=32+12*it
        e(f"v_add_u32 v5, {512*it}, v0")
        e("v_lshlrev_b32 v7, 4, v5"); e("v_lshlrev_b32 v8, 3, v5"); e(f"v_add_u32 v8, {KE}, v8")
        e(f"s_waitcnt vmcnt({12+3*(3-it)})")
        e(f"ds_write_b128 v7, v[{R}:{R+3}]"); e(f"ds_write_b128 v7, v[{R+4}:{R+7}] offset:32768"); e(f"ds_write_b64 v8, v[{R+8}:{R+9}]")
    VW=[]
    for it in range(4):
        R=140+12*it; A=R+9
        VW+=[f"v_add_u32 v{A}, {512*it}, v0", f"v_lshrrev_b32 v{A+1}, 4, v{A}", f"v_mul_u32_u24 v{A+1}, 608, v{A+1}", f"v_bfe_u32 v{A+2}, v{A}, 2, 1", f"v_mul_u32_u24 v{A+2}, 304, v{A+2}", f"v_add_u32 v{A+1}, v{A+1}, v{A+2}",
             f"v_bfe_u32 v{A+2}, v{A}, 3, 1", f"v_and_b32 v{A}, 3, v{A}", f"v_lshl_add_u32 v{A}, v{A+2}, 2, v{A}", f"v_lshl_add_u32 v{A+1}, v{A}, 1, v{A+1}", f"v_add_u32 v{A+1}, {VB}, v{A+1}", f"v_mov_b32 v{A}, 0x3f80"]
        for d in range(18):
            r=R+d//2
            VW.append(f"ds_write_b16 v{A+1}, v{r} offset:{d*16}" if d%2==0 else f"ds_write_b16_d16_hi v{A+1}, v{r} offset:{d*16}")
        VW.append(f"ds_write_b16 v{A+1}, v{A} offset:{18*16}")
    e("s_waitcnt lgkmcnt(0)")
    e("s_lshl_b32 s20, s17, 8"); e("s_lshl_b32 s21, s18, 5"); e("s_add_u32 s20, s20, s21"); e("v_add_u32 v5, s20, v3")
    e("v_mul_u32_u24 v6, 36, v5"); e("v_add_u32 v6, s19, v6"); e("v_lshl_add_u32 v7, v4, 4, v6")
    e("buffer_load_dwordx4 v[40:43], v7, s[36:39], 0 offen")
    e("buffer_load_dword v44, v6, s[36:39], 0 offen offset:32")
    e("v_mov_b32 v45, 0")
    e("v_lshlrev_b32 v10, 4, v3"); e("v_lshl_add_u32 v10, v4, 15, v10")
    e(f"v_lshlrev_b32 v11, 3, v3"); e(f"v_add_u32 v11, {KE}, v11")
    e("v_min_u32 v12, 18, v3"); e("v_lshlrev_b32 v12, 4, v12"); e("v_mul_u32_u24 v13, 304, v4"); e("v_add_u32 v12, v12, v13"); e(f"v_add_u32 v12, {VB}, v12"); e("v_add_u32 v13, 38912, v12")
    e("s_waitcnt vmcnt(0) lgkmcnt(0)")
    e("v_cmp_eq_u32 vcc, 0, v4"); e("s_nop 1"); e("v_cndmask_b32 v44, 0, v44, vcc")
    e("s_barrier")
    if "m5" in ABL:
        srd(48,4,576*576*2); srd(52,6,4608*576*2)
        e("s_lshr_b32 s25, s2, 3"); e("s_lshl_b32 s25, s25, 9"); e("v_add_u32 v15, s25, v0")
        e("v_mul_u32_u24 v16, 7282, v15"); e("v_lshrrev_b32 v16, 16, v16"); e("v_mul_u32_u24 v17, 9, v16"); e("v_sub_u32 v17, v15, v17"); e("v_lshlrev_b32 v17, 7, v17")
        e("s_movk_i32 s25, 9792"); e("v_cmp_gt_u32 vcc, s25, v15"); e("v_mov_b32 v19, 0x100000"); e("v_cndmask_b32 v16, v19, v16, vcc")
        for c in range(2):
            G=30 if "m6" in ABL else 32
            e("s_and_b32 s25, s2, 7"); e(f"s_mul_i32 s25, s25, {G}")
            if c: e(f"s_add_u32 s25, s25, {G-1}"); e("s_min_u32 s25, s25, 239")
            e("s_mul_i32 s26, s25, 1366"); e("s_lshr_b32 s26, s26, 16")
            if c: e("s_cmp_eq_u32 s26, s27"); e("s_cbranch_scc1 at_pfskip")
            else: e("s_mov_b32 s27, s26")
            e("s_lshl_b32 s25, s26, 10"); e("s_min_u32 s26, s26, 1"); e("s_lshl_b32 s26, s26, 6"); e("s_add_u32 s25, s25, s26")
            e("v_add_u32 v18, s25, v16"); e("v_mul_u32_u24 v18, 1152, v18"); e("v_add_u32 v18, v18, v17"); e("v_subrev_u32 v19, 663552, v18")
            e("buffer_load_dword v188, v18, s[48:51], 0 offen"); e("buffer_load_dword v189, v19, s[52:55], 0 offen")
        e("at_pfskip:")
        if "pa" in ABL:
            e("v_lshrrev_b32 v16, 10, v15"); e("s_and_b32 s25, s2, 7"); e("s_mul_i32 s25, s25, 10"); e("v_add_u32 v16, s25, v16"); e("v_lshrrev_b32 v17, 4, v16"); e("v_and_b32 v16, 15, v16")
            e("v_bfe_u32 v18, v15, 3, 7"); e("v_lshl_add_u32 v18, v16, 7, v18"); e(f"s_movk_i32 s25, {LDA}"); e("v_mul_lo_u32 v18, v18, s25")
            e("v_lshlrev_b32 v19, 4, v17"); e("v_add_u32 v19, 1, v19"); e("v_cmp_eq_u32 vcc, 0, v17"); e("v_cndmask_b32 v19, v19, 9, vcc"); e("v_and_b32 v16, 7, v15"); e("v_add_u32 v19, v19, v16"); e("v_lshl_add_u32 v18, v19, 7, v18")
            e("s_movk_i32 s25, 10240"); e("v_cmp_gt_u32 vcc, s25, v15"); e("v_mov_b32 v19, 0x7fffff00"); e("v_cndmask_b32 v18, v19, v18, vcc")
            e("buffer_load_dword v190, v18, s[44:47], 0 offen")
        e("v_cmp_eq_u32 vcc, 0, v4")
    elif "nopf2" not in ABL:
        srd(48,4,576*576*2); srd(52,6,4608*576*2)
        e("s_lshr_b32 s25, s2, 3"); e("s_lshl_b32 s25, s25, 9"); e("v_add_u32 v15, s25, v0")
        e("v_lshrrev_b32 v16, 12, v15"); e("v_and_b32 v15, 4095, v15")
        e("s_and_b32 s25, s2, 7"); e("s_lshl_b32 s25, s25, 1"); e("v_add_u32 v17, s25, v16")
        e("v_cmp_gt_u32 vcc, 2, v16"); e("v_cmp_gt_u32 s[26:27], 15, v17"); e("s_and_b64 vcc, vcc, s[26:27]"); e("s_movk_i32 s25, 3264"); e("v_cmp_gt_u32 s[26:27], s25, v15"); e("s_and_b64 vcc, vcc, s[26:27]")
        e("v_mul_u32_u24 v16, 21846, v17"); e("v_lshrrev_b32 v16, 16, v16"); e("v_mul_u32_u24 v18, 3, v16"); e("v_sub_u32 v17, v17, v18")
        e("v_lshlrev_b32 v18, 10, v16"); e("v_min_u32 v16, 1, v16"); e("v_lshl_add_u32 v18, v16, 6, v18")
        e("v_mul_u32_u24 v16, 21846, v15"); e("v_lshrrev_b32 v16, 16, v16"); e("v_mul_u32_u24 v19, 3, v16"); e("v_sub_u32 v15, v15, v19")
        e("v_add_u32 v18, v18, v16"); e("v_mul_u32_u24 v16, 1152, v18"); e("v_mul_u32_u24 v17, 384, v17"); e("v_lshl_add_u32 v15, v15, 7, v17"); e("v_add_u32 v16, v16, v15")
        e("v_mov_b32 v19, 0x7fffff00"); e("v_cndmask_b32 v16, v19, v16, vcc")
        e("s_movk_i32 s25, 576"); e("v_cmp_gt_u32 vcc, s25, v18"); e("v_cndmask_b32 v15, v19, v16, vcc"); e("v_subrev_u32 v16, 663552, v16"); e("v_cndmask_b32 v16, v16, v19, vcc")
        e("buffer_load_dword v188, v15, s[48:51], 0 offen"); e("buffer_load_dword v189, v16, s[52:55], 0 offen")
        if "pf3" in ABL:
            e("s_lshr_b32 s25, s2, 3"); e("s_lshl_b32 s25, s25, 9"); e("v_add_u32 v15, s25, v0")
            e("v_lshrrev_b32 v16, 13, v15"); e("v_and_b32 v15, 8191, v15")
            e("s_and_b32 s25, s2, 7"); e("s_lshl_b32 s25, s25, 1"); e("v_add_u32 v17, s25, v16")
            e("v_mul_u32_u24 v16, 21846, v17"); e("v_lshrrev_b32 v16, 16, v16")
            e("v_cmp_gt_u32 vcc, 15, v17"); e("v_cmp_lt_u32 s[26:27], 0, v16"); e("s_and_b64 vcc, vcc, s[26:27]")
            e("v_lshlrev_b32 v18, 11, v16"); e("v_add_u32 v18, 128, v18")
            e("v_lshrrev_b32 v16, 2, v15"); e("v_and_b32 v15, 3, v15"); e("v_lshl_add_u32 v18, v15, 7, v18"); e(f"s_movk_i32 s25, {LDA}"); e("v_mul_lo_u32 v16, v16, s25"); e("v_add_u32 v16, v16, v18")
            e("v_cndmask_b32 v16, v19, v16, vcc"); e("buffer_load_dword v190, v16, s[44:47], 0 offen")
        e("v_cmp_eq_u32 vcc, 0, v4")
    S=[64,80]; KF=[48,56]; PF=96; VF=[104,112]; O=120; MX=14
    def rdk(t,b):
        e(f"ds_read_b128 v[{KF[b]}:{KF[b]+3}], v10 offset:{t*512}"); e(f"ds_read_b64 v[{KF[b]+4}:{KF[b]+5}], v11 offset:{t*256}")
    def qk(b):
        e(f"v_mfma_f32_32x32x16_bf16 v[{S[b]}:{S[b]+15}], v[{KF[b]}:{KF[b]+3}], v[40:43], 0")
        e(f"v_mfma_f32_32x32x8_bf16 v[{S[b]}:{S[b]+15}], v[{KF[b]+4}:{KF[b]+5}], v[44:45], v[{S[b]}:{S[b]+15}]")
    def mx(b):
        for i in range(8): e(f"v_max3_f32 v{MX}, v{MX}, v{S[b]+2*i}, v{S[b]+2*i+1}")
    stamp(1); stamp(5,wv=4)
    e(f"v_mov_b32 v{MX}, 0xff800000")
    rdk(0,0)
    for t in range(64):
        b=t&1
        if t==32: assert not VW; e("s_waitcnt lgkmcnt(0)"); e("s_barrier")
        if t<63: rdk(t+1,b^1); e("s_waitcnt lgkmcnt(2)")
        else: e("s_waitcnt lgkmcnt(0)")
        e(f"v_mfma_f32_32x32x16_bf16 v[{S[b]}:{S[b]+15}], v[{KF[b]}:{KF[b]+3}], v[40:43], 0")
        if t>0:
            for i in range(4): e(f"v_max3_f32 v{MX}, v{MX}, v{S[b^1]+2*i}, v{S[b^1]+2*i+1}")
        for _ in range(3):
            if VW: e(VW.pop(0))
        e(f"v_mfma_f32_32x32x8_bf16 v[{S[b]}:{S[b]+15}], v[{KF[b]+4}:{KF[b]+5}], v[44:45], v[{S[b]}:{S[b]+15}]")
        if t>0:
            for i in range(4,8): e(f"v_max3_f32 v{MX}, v{MX}, v{S[b^1]+2*i}, v{S[b^1]+2*i+1}")
        for _ in range(3):
            if VW: e(VW.pop(0))
    e("s_nop 15"); mx(1)
    e(f"v_mov_b32 v15, v{MX}"); e("s_nop 1"); e(f"v_permlane32_swap_b32 v{MX}, v15"); e("s_nop 1"); e(f"v_max_f32 v{MX}, v{MX}, v15")
    e(f"v_sub_f32 v15, 0, v{MX}"); e("v_cvt_pk_bf16_f32 v16, v15, v15"); e("v_lshlrev_b32 v17, 16, v16"); e("v_sub_f32 v17, v15, v17"); e("v_cvt_pk_bf16_f32 v17, v17, v17")
    e("v_and_b32 v16, 0xffff, v16"); e("v_lshl_or_b32 v16, v17, 16, v16"); e("v_cndmask_b32 v45, 0, v16, vcc")
    for i in range(16): e(f"v_mov_b32 v{O+i}, 0")
    stamp(2); stamp(6,wv=4)
    def rdv(t,b):
        for g in range(2):
            G=2*t+g; r,o=(12,G*608) if G<64 else (13,(G-64)*608)
            e(f"ds_read_b128 v[{VF[b]+4*g}:{VF[b]+4*g+3}], v{r} offset:{o}")
    def sm(b):
        for i in range(16): e(f"v_exp_f32 v{S[b]+i}, v{S[b]+i}")
        for i in range(8): e(f"v_cvt_pk_bf16_f32 v{PF+i}, v{S[b]+2*i}, v{S[b]+2*i+1}")
    def pv(b):
        for g in range(2): e(f"v_mfma_f32_32x32x16_bf16 v[{O}:{O+15}], v[{VF[b]+4*g}:{VF[b]+4*g+3}], v[{PF+4*g}:{PF+4*g+3}], v[{O}:{O+15}]")
    PFB=[PF,140]
    rdk(0,0); rdk(1,1); e("s_waitcnt lgkmcnt(2)"); qk(0)
    for t in range(65):
        b=t&1
        e("s_waitcnt lgkmcnt(0)")
        M=[]
        if t<63:
            M.append(f"v_mfma_f32_32x32x16_bf16 v[{S[b^1]}:{S[b^1]+15}], v[{KF[b^1]}:{KF[b^1]+3}], v[40:43], 0")
            M.append(f"v_mfma_f32_32x32x8_bf16 v[{S[b^1]}:{S[b^1]+15}], v[{KF[b^1]+4}:{KF[b^1]+5}], v[44:45], v[{S[b^1]}:{S[b^1]+15}]")
        if t>0:
            for g_ in range(2): M.append(f"v_mfma_f32_32x32x16_bf16 v[{O}:{O+15}], v[{VF[b^1]+4*g_}:{VF[b^1]+4*g_+3}], v[{PFB[b^1]+4*g_}:{PFB[b^1]+4*g_+3}], v[{O}:{O+15}]")
        if t==0: e("s_nop 7")
        if t<64:
            for i in range(16):
                if i%4==0 and M: e(M.pop(0))
                if i==6 and t+2<64: rdk(t+2,b)
                if i==10: rdv(t,b)
                e(f"v_exp_f32 v{S[b]+i}, v{S[b]+i}")
            for i in range(8): e(f"v_cvt_pk_bf16_f32 v{PFB[b]+i}, v{S[b]+2*i}, v{S[b]+2*i+1}")
        for z in M: e(z)
    e("s_nop 15")
    e(f"v_mov_b32 v15, v{O+10}"); e(f"v_mov_b32 v16, v{O+10}"); e("s_nop 1"); e("v_permlane32_swap_b32 v15, v16"); e("s_nop 1")
    e("v_rcp_f32 v15, v15"); e("s_nop 0")
    for i in range(10): e(f"v_mul_f32 v{O+i}, v{O+i}, v15")
    for i in range(5): e(f"v_cvt_pk_bf16_f32 v{O+i}, v{O+2*i}, v{O+2*i+1}")
    e(f"s_movk_i32 s42, {LDA}"); e("v_mul_lo_u32 v6, v5, s42"); e("v_add_u32 v6, s22, v6"); e("v_lshl_add_u32 v7, v4, 3, v6")
    e("v_lshl_add_u32 v8, v4, 30, v6")
    e(f"buffer_store_dwordx2 v[{O}:{O+1}], v7, s[44:47], 0 offen"); e(f"buffer_store_dwordx2 v[{O+2}:{O+3}], v7, s[44:47], 0 offen offset:16")
    e(f"buffer_store_dword v{O+4}, v8, s[44:47], 0 offen offset:32")
    stamp(3); stamp(7,wv=4)
    e("at_end:"); e("s_endpgm")
    e(kdesc("at_kernel",256 if "stamp" in ABL else 192))
```

```python
from gen import *
def k2():
    khead("at_kernel")
    e("s_cmp_ge_u32 s2, 256"); e("s_cbranch_scc1 at_end")
    e("s_load_dwordx2 s[12:13], s[0:1], 72"); e("s_load_dwordx2 s[4:5], s[0:1], 16"); e("s_load_dwordx2 s[6:7], s[0:1], 48")
    e("s_and_b32 s16, s2, 31"); e("s_lshr_b32 s17, s2, 5")
    e("v_lshrrev_b32 v1, 6, v0"); e("s_nop 0"); e("v_readfirstlane_b32 s18, v1")
    e("v_and_b32 v2, 63, v0"); e("v_and_b32 v3, 31, v2"); e("v_lshrrev_b32 v4, 5, v2")
    e("s_waitcnt lgkmcnt(0)")
    e("s_add_u32 s40, s12, %d"%WS_QKV); e("s_addc_u32 s41, s13, 0"); srd(36,40,2048*LDQ)
    e("s_add_u32 s40, s12, %d"%WS_AH); e("s_addc_u32 s41, s13, 0"); srd(44,40,2048*LDA)
    e("s_mul_i32 s19, s16, 73728"); e("s_mul_i32 s22, s16, 36")
    KE=65536; VB=81920
    stamp(0); stamp(4,wv=4)
    e("s_mov_b32 s23, 2359296"); e("s_mov_b32 s24, 4718592")
    for it in range(4):
        R=32+12*it
        e(f"v_add_u32 v5, {512*it}, v0")
        e(f"v_mul_u32_u24 v6, 36, v5"); e("v_add_u32 v6, s19, v6")
        e(f"buffer_load_dwordx4 v[{R}:{R+3}], v6, s[36:39], s23 offen")
        e(f"buffer_load_dwordx4 v[{R+4}:{R+7}], v6, s[36:39], s23 offen offset:16")
        e(f"buffer_load_dword v{R+8}, v6, s[36:39], s23 offen offset:32")
        e(f"v_mov_b32 v{R+9}, 0x3f803f80")
    for it in range(4):
        R=140+12*it
        e(f"v_add_u32 v5, {512*it}, v0")
        e(f"v_mul_u32_u24 v6, 36, v5"); e("v_add_u32 v6, s19, v6")
        e(f"buffer_load_dwordx4 v[{R}:{R+3}], v6, s[36:39], s24 offen")
        e(f"buffer_load_dwordx4 v[{R+4}:{R+7}], v6, s[36:39], s24 offen offset:16")
        e(f"buffer_load_dword v{R+8}, v6, s[36:39], s24 offen offset:32")
    for it in range(4):
        R=32+12*it
        e(f"v_add_u32 v5, {512*it}, v0")
        e("v_lshlrev_b32 v7, 4, v5"); e("v_lshlrev_b32 v8, 3, v5"); e(f"v_add_u32 v8, {KE}, v8")
        e(f"s_waitcnt vmcnt({12+3*(3-it)})")
        e(f"ds_write_b128 v7, v[{R}:{R+3}]"); e(f"ds_write_b128 v7, v[{R+4}:{R+7}] offset:32768"); e(f"ds_write_b64 v8, v[{R+8}:{R+9}]")
    VW=[]
    for it in range(4):
        R=140+12*it; A=R+9
        VW+=[f"v_add_u32 v{A}, {512*it}, v0", f"v_lshrrev_b32 v{A+1}, 4, v{A}", f"v_mul_u32_u24 v{A+1}, 608, v{A+1}", f"v_bfe_u32 v{A+2}, v{A}, 2, 1", f"v_mul_u32_u24 v{A+2}, 304, v{A+2}", f"v_add_u32 v{A+1}, v{A+1}, v{A+2}",
             f"v_bfe_u32 v{A+2}, v{A}, 3, 1", f"v_and_b32 v{A}, 3, v{A}", f"v_lshl_add_u32 v{A}, v{A+2}, 2, v{A}", f"v_lshl_add_u32 v{A+1}, v{A}, 1, v{A+1}", f"v_add_u32 v{A+1}, {VB}, v{A+1}", f"v_mov_b32 v{A}, 0x3f80"]
        for d in range(18):
            r=R+d//2
            VW.append(f"ds_write_b16 v{A+1}, v{r} offset:{d*16}" if d%2==0 else f"ds_write_b16_d16_hi v{A+1}, v{r} offset:{d*16}")
        VW.append(f"ds_write_b16 v{A+1}, v{A} offset:{18*16}")
    e("s_waitcnt lgkmcnt(0)")
    e("s_lshl_b32 s20, s17, 8"); e("s_lshl_b32 s21, s18, 5"); e("s_add_u32 s20, s20, s21"); e("v_add_u32 v5, s20, v3")
    e("v_mul_u32_u24 v6, 36, v5"); e("v_add_u32 v6, s19, v6"); e("v_lshl_add_u32 v7, v4, 4, v6")
    e("buffer_load_dwordx4 v[40:43], v7, s[36:39], 0 offen")
    e("buffer_load_dword v44, v6, s[36:39], 0 offen offset:32")
    e("v_mov_b32 v45, 0")
    e("v_lshlrev_b32 v10, 4, v3"); e("v_lshl_add_u32 v10, v4, 15, v10")
    e(f"v_lshlrev_b32 v11, 3, v3"); e(f"v_add_u32 v11, {KE}, v11")
    e("v_min_u32 v12, 18, v3"); e("v_lshlrev_b32 v12, 4, v12"); e("v_mul_u32_u24 v13, 304, v4"); e("v_add_u32 v12, v12, v13"); e(f"v_add_u32 v12, {VB}, v12"); e("v_add_u32 v13, 38912, v12")
    e("s_waitcnt vmcnt(0) lgkmcnt(0)")
    e("v_cmp_eq_u32 vcc, 0, v4"); e("s_nop 1"); e("v_cndmask_b32 v44, 0, v44, vcc")
    e("s_barrier")
    if "m5" in ABL:
        srd(48,4,576*576*2); srd(52,6,4608*576*2)
        e("s_lshr_b32 s25, s2, 3"); e("s_lshl_b32 s25, s25, 9"); e("v_add_u32 v15, s25, v0")
        e("v_mul_u32_u24 v16, 7282, v15"); e("v_lshrrev_b32 v16, 16, v16"); e("v_mul_u32_u24 v17, 9, v16"); e("v_sub_u32 v17, v15, v17"); e("v_lshlrev_b32 v17, 7, v17")
        e("s_movk_i32 s25, 9792"); e("v_cmp_gt_u32 vcc, s25, v15"); e("v_mov_b32 v19, 0x100000"); e("v_cndmask_b32 v16, v19, v16, vcc")
        for c in range(2):
            G=30 if "m6" in ABL else 32
            e("s_and_b32 s25, s2, 7"); e(f"s_mul_i32 s25, s25, {G}")
            if c: e(f"s_add_u32 s25, s25, {G-1}"); e("s_min_u32 s25, s25, 239")
            e("s_mul_i32 s26, s25, 1366"); e("s_lshr_b32 s26, s26, 16")
            if c: e("s_cmp_eq_u32 s26, s27"); e("s_cbranch_scc1 at_pfskip")
            else: e("s_mov_b32 s27, s26")
            e("s_lshl_b32 s25, s26, 10"); e("s_min_u32 s26, s26, 1"); e("s_lshl_b32 s26, s26, 6"); e("s_add_u32 s25, s25, s26")
            e("v_add_u32 v18, s25, v16"); e("v_mul_u32_u24 v18, 1152, v18"); e("v_add_u32 v18, v18, v17"); e("v_subrev_u32 v19, 663552, v18")
            e("buffer_load_dword v188, v18, s[48:51], 0 offen"); e("buffer_load_dword v189, v19, s[52:55], 0 offen")
        e("at_pfskip:")
        if "pa" in ABL:
            e("v_lshrrev_b32 v16, 10, v15"); e("s_and_b32 s25, s2, 7"); e("s_mul_i32 s25, s25, 10"); e("v_add_u32 v16, s25, v16"); e("v_lshrrev_b32 v17, 4, v16"); e("v_and_b32 v16, 15, v16")
            e("v_bfe_u32 v18, v15, 3, 7"); e("v_lshl_add_u32 v18, v16, 7, v18"); e(f"s_movk_i32 s25, {LDA}"); e("v_mul_lo_u32 v18, v18, s25")
            e("v_lshlrev_b32 v19, 4, v17"); e("v_add_u32 v19, 1, v19"); e("v_cmp_eq_u32 vcc, 0, v17"); e("v_cndmask_b32 v19, v19, 9, vcc"); e("v_and_b32 v16, 7, v15"); e("v_add_u32 v19, v19, v16"); e("v_lshl_add_u32 v18, v19, 7, v18")
            e("s_movk_i32 s25, 10240"); e("v_cmp_gt_u32 vcc, s25, v15"); e("v_mov_b32 v19, 0x7fffff00"); e("v_cndmask_b32 v18, v19, v18, vcc")
            if "pd" in ABL: e("v_cmp_lt_u32 vcc, 3, v16"); e("v_cndmask_b32 v18, v18, v19, vcc")
            e("buffer_load_dword v190, v18, s[44:47], 0 offen")
            if "pb" in ABL:
                e("v_cmp_eq_u32 vcc, 0, v17"); e("v_cndmask_b32 v18, v18, v19, vcc")
                if "pc" in ABL: e("v_cmp_lt_u32 vcc, 3, v16"); e("v_cndmask_b32 v18, v18, v19, vcc")
                e("buffer_load_dword v190, v18, s[44:47], 0 offen offset:1024")
        e("v_cmp_eq_u32 vcc, 0, v4")
    elif "nopf2" not in ABL:
        srd(48,4,576*576*2); srd(52,6,4608*576*2)
        e("s_lshr_b32 s25, s2, 3"); e("s_lshl_b32 s25, s25, 9"); e("v_add_u32 v15, s25, v0")
        e("v_lshrrev_b32 v16, 12, v15"); e("v_and_b32 v15, 4095, v15")
        e("s_and_b32 s25, s2, 7"); e("s_lshl_b32 s25, s25, 1"); e("v_add_u32 v17, s25, v16")
        e("v_cmp_gt_u32 vcc, 2, v16"); e("v_cmp_gt_u32 s[26:27], 15, v17"); e("s_and_b64 vcc, vcc, s[26:27]"); e("s_movk_i32 s25, 3264"); e("v_cmp_gt_u32 s[26:27], s25, v15"); e("s_and_b64 vcc, vcc, s[26:27]")
        e("v_mul_u32_u24 v16, 21846, v17"); e("v_lshrrev_b32 v16, 16, v16"); e("v_mul_u32_u24 v18, 3, v16"); e("v_sub_u32 v17, v17, v18")
        e("v_lshlrev_b32 v18, 10, v16"); e("v_min_u32 v16, 1, v16"); e("v_lshl_add_u32 v18, v16, 6, v18")
        e("v_mul_u32_u24 v16, 21846, v15"); e("v_lshrrev_b32 v16, 16, v16"); e("v_mul_u32_u24 v19, 3, v16"); e("v_sub_u32 v15, v15, v19")
        e("v_add_u32 v18, v18, v16"); e("v_mul_u32_u24 v16, 1152, v18"); e("v_mul_u32_u24 v17, 384, v17"); e("v_lshl_add_u32 v15, v15, 7, v17"); e("v_add_u32 v16, v16, v15")
        e("v_mov_b32 v19, 0x7fffff00"); e("v_cndmask_b32 v16, v19, v16, vcc")
        e("s_movk_i32 s25, 576"); e("v_cmp_gt_u32 vcc, s25, v18"); e("v_cndmask_b32 v15, v19, v16, vcc"); e("v_subrev_u32 v16, 663552, v16"); e("v_cndmask_b32 v16, v16, v19, vcc")
        e("buffer_load_dword v188, v15, s[48:51], 0 offen"); e("buffer_load_dword v189, v16, s[52:55], 0 offen")
        if "pf3" in ABL:
            e("s_lshr_b32 s25, s2, 3"); e("s_lshl_b32 s25, s25, 9"); e("v_add_u32 v15, s25, v0")
            e("v_lshrrev_b32 v16, 13, v15"); e("v_and_b32 v15, 8191, v15")
            e("s_and_b32 s25, s2, 7"); e("s_lshl_b32 s25, s25, 1"); e("v_add_u32 v17, s25, v16")
            e("v_mul_u32_u24 v16, 21846, v17"); e("v_lshrrev_b32 v16, 16, v16")
            e("v_cmp_gt_u32 vcc, 15, v17"); e("v_cmp_lt_u32 s[26:27], 0, v16"); e("s_and_b64 vcc, vcc, s[26:27]")
            e("v_lshlrev_b32 v18, 11, v16"); e("v_add_u32 v18, 128, v18")
            e("v_lshrrev_b32 v16, 2, v15"); e("v_and_b32 v15, 3, v15"); e("v_lshl_add_u32 v18, v15, 7, v18"); e(f"s_movk_i32 s25, {LDA}"); e("v_mul_lo_u32 v16, v16, s25"); e("v_add_u32 v16, v16, v18")
            e("v_cndmask_b32 v16, v19, v16, vcc"); e("buffer_load_dword v190, v16, s[44:47], 0 offen")
        e("v_cmp_eq_u32 vcc, 0, v4")
    S=[64,80]; KF=[48,56]; PF=96; VF=[104,112]; O=120; MX=14
    def rdk(t,b):
        e(f"ds_read_b128 v[{KF[b]}:{KF[b]+3}], v10 offset:{t*512}"); e(f"ds_read_b64 v[{KF[b]+4}:{KF[b]+5}], v11 offset:{t*256}")
    def qk(b):
        e(f"v_mfma_f32_32x32x16_bf16 v[{S[b]}:{S[b]+15}], v[{KF[b]}:{KF[b]+3}], v[40:43], 0")
        e(f"v_mfma_f32_32x32x8_bf16 v[{S[b]}:{S[b]+15}], v[{KF[b]+4}:{KF[b]+5}], v[44:45], v[{S[b]}:{S[b]+15}]")
    def mx(b):
        for i in range(8): e(f"v_max3_f32 v{MX}, v{MX}, v{S[b]+2*i}, v{S[b]+2*i+1}")
    stamp(1); stamp(5,wv=4)
    e(f"v_mov_b32 v{MX}, 0xff800000")
    rdk(0,0)
    for t in range(64):
        b=t&1
        if t==32: assert not VW; e("s_waitcnt lgkmcnt(0)"); e("s_barrier")
        if t<63: rdk(t+1,b^1); e("s_waitcnt lgkmcnt(2)")
        else: e("s_waitcnt lgkmcnt(0)")
        e(f"v_mfma_f32_32x32x16_bf16 v[{S[b]}:{S[b]+15}], v[{KF[b]}:{KF[b]+3}], v[40:43], 0")
        if t>0:
            for i in range(4): e(f"v_max3_f32 v{MX}, v{MX}, v{S[b^1]+2*i}, v{S[b^1]+2*i+1}")
        for _ in range(3):
            if VW: e(VW.pop(0))
        e(f"v_mfma_f32_32x32x8_bf16 v[{S[b]}:{S[b]+15}], v[{KF[b]+4}:{KF[b]+5}], v[44:45], v[{S[b]}:{S[b]+15}]")
        if t>0:
            for i in range(4,8): e(f"v_max3_f32 v{MX}, v{MX}, v{S[b^1]+2*i}, v{S[b^1]+2*i+1}")
        for _ in range(3):
            if VW: e(VW.pop(0))
    e("s_nop 15"); mx(1)
    e(f"v_mov_b32 v15, v{MX}"); e("s_nop 1"); e(f"v_permlane32_swap_b32 v{MX}, v15"); e("s_nop 1"); e(f"v_max_f32 v{MX}, v{MX}, v15")
    e(f"v_sub_f32 v15, 0, v{MX}"); e("v_cvt_pk_bf16_f32 v16, v15, v15"); e("v_lshlrev_b32 v17, 16, v16"); e("v_sub_f32 v17, v15, v17"); e("v_cvt_pk_bf16_f32 v17, v17, v17")
    e("v_and_b32 v16, 0xffff, v16"); e("v_lshl_or_b32 v16, v17, 16, v16"); e("v_cndmask_b32 v45, 0, v16, vcc")
    for i in range(16): e(f"v_mov_b32 v{O+i}, 0")
    stamp(2); stamp(6,wv=4)
    def rdv(t,b):
        for g in range(2):
            G=2*t+g; r,o=(12,G*608) if G<64 else (13,(G-64)*608)
            e(f"ds_read_b128 v[{VF[b]+4*g}:{VF[b]+4*g+3}], v{r} offset:{o}")
    def sm(b):
        for i in range(16): e(f"v_exp_f32 v{S[b]+i}, v{S[b]+i}")
        for i in range(8): e(f"v_cvt_pk_bf16_f32 v{PF+i}, v{S[b]+2*i}, v{S[b]+2*i+1}")
    def pv(b):
        for g in range(2): e(f"v_mfma_f32_32x32x16_bf16 v[{O}:{O+15}], v[{VF[b]+4*g}:{VF[b]+4*g+3}], v[{PF+4*g}:{PF+4*g+3}], v[{O}:{O+15}]")
    PFB=[PF,140]
    rdk(0,0); rdk(1,1); e("s_waitcnt lgkmcnt(2)"); qk(0)
    for t in range(65):
        b=t&1
        e("s_waitcnt lgkmcnt(0)")
        M=[]
        if t<63:
            M.append(f"v_mfma_f32_32x32x16_bf16 v[{S[b^1]}:{S[b^1]+15}], v[{KF[b^1]}:{KF[b^1]+3}], v[40:43], 0")
            M.append(f"v_mfma_f32_32x32x8_bf16 v[{S[b^1]}:{S[b^1]+15}], v[{KF[b^1]+4}:{KF[b^1]+5}], v[44:45], v[{S[b^1]}:{S[b^1]+15}]")
        if t>0:
            for g_ in range(2): M.append(f"v_mfma_f32_32x32x16_bf16 v[{O}:{O+15}], v[{VF[b^1]+4*g_}:{VF[b^1]+4*g_+3}], v[{PFB[b^1]+4*g_}:{PFB[b^1]+4*g_+3}], v[{O}:{O+15}]")
        if t==0: e("s_nop 7")
        if t<64:
            for i in range(16):
                if i%4==0 and M: e(M.pop(0))
                if i==6 and t+2<64: rdk(t+2,b)
                if i==10: rdv(t,b)
                e(f"v_exp_f32 v{S[b]+i}, v{S[b]+i}")
            for i in range(8): e(f"v_cvt_pk_bf16_f32 v{PFB[b]+i}, v{S[b]+2*i}, v{S[b]+2*i+1}")
        for z in M: e(z)
    e("s_nop 15")
    e(f"v_mov_b32 v15, v{O+10}"); e(f"v_mov_b32 v16, v{O+10}"); e("s_nop 1"); e("v_permlane32_swap_b32 v15, v16"); e("s_nop 1")
    e("v_rcp_f32 v15, v15"); e("s_nop 0")
    for i in range(10): e(f"v_mul_f32 v{O+i}, v{O+i}, v15")
    for i in range(5): e(f"v_cvt_pk_bf16_f32 v{O+i}, v{O+2*i}, v{O+2*i+1}")
    e(f"s_movk_i32 s42, {LDA}"); e("v_mul_lo_u32 v6, v5, s42"); e("v_add_u32 v6, s22, v6"); e("v_lshl_add_u32 v7, v4, 3, v6")
    e("v_lshl_add_u32 v8, v4, 30, v6")
    e(f"buffer_store_dwordx2 v[{O}:{O+1}], v7, s[44:47], 0 offen"); e(f"buffer_store_dwordx2 v[{O+2}:{O+3}], v7, s[44:47], 0 offen offset:16")
    e(f"buffer_store_dword v{O+4}, v8, s[44:47], 0 offen offset:32")
    stamp(3); stamp(7,wv=4)
    e("at_end:"); e("s_endpgm")
    e(kdesc("at_kernel",256 if "stamp" in ABL else 192))
```
